```python
import torch

def _softmax(x, axis=-1):
    return torch.softmax(x, dim=axis)
def _gelu(x):
    return torch.nn.functional.gelu(x, approximate="tanh")
def _silu(x):
    return torch.nn.functional.silu(x)
def _sigmoid(x):
    return torch.sigmoid(x)
def _layernorm(x, axis=-1, eps=1e-5):
    m = x.mean(dim=axis, keepdim=True)
    v = x.var(dim=axis, keepdim=True, unbiased=False)
    return (x - m) / torch.sqrt(v + eps)
def _scatter_add(tgt, idx, src, axis=0):
    return tgt.clone().index_add_(axis, idx, src)
def _segment_sum(src, seg, n):
    out = torch.zeros((n,) + src.shape[1:], dtype=src.dtype)
    return out.index_add_(0, seg, src)
def _pad(x, pw):
    flat = tuple(v for pair in reversed(pw) for v in pair)
    return torch.nn.functional.pad(x, flat)

kernel_name = 'gated_mix__sliding_local_dilated__sliding_local_dilated__prompt'

def setup_inputs():

    _w = (lambda a: (lambda t: t.to(torch.bfloat16) if t.is_floating_point() else t)(torch.as_tensor(a)))
    def _A_setup():
        B, S, D = 1, 2048, 576
        return {
            "x": _w((lambda *s: torch.randn(*s, dtype=torch.bfloat16) * 0.05)(B, S, D)),
            "wqkv": _w((lambda *s: torch.randn(*s, dtype=torch.bfloat16) * 0.8)(D, 3 * D)),
            "wo": _w((lambda *s: torch.randn(*s, dtype=torch.bfloat16) * 0.05)(D, D)),
        }
    _A_in = _A_setup()

    def _B_setup():
        B, S, D = 1, 2048, 576
        return {
            "x": _w((lambda *s: torch.randn(*s, dtype=torch.bfloat16) * 0.05)(B, S, D)),
            "wqkv": _w((lambda *s: torch.randn(*s, dtype=torch.bfloat16) * 0.8)(D, 3 * D)),
            "wo": _w((lambda *s: torch.randn(*s, dtype=torch.bfloat16) * 0.05)(D, D)),
        }
    _B_in = _B_setup()

    return {
        "A_x": _A_in["x"],
        "A_wqkv": _A_in["wqkv"],
        "A_wo": _A_in["wo"],
        "B_x": _B_in["x"],
        "B_wqkv": _B_in["wqkv"],
        "B_wo": _B_in["wo"],
        "gate_w": _w((lambda *s: torch.randn(*s, dtype=torch.bfloat16) * 0.05)(576) * 16.0),
    }

def reference(A_x, A_wqkv, A_wo, B_x, B_wqkv, B_wo, gate_w):
    def _A_ref(x, wqkv, wo):
        B, S, D = x.shape
        H = 32; Dh = D // H
        W, dil = 8, 2
        qkv = (lambda x, *d: x.permute(*d))((x @ wqkv).reshape(B, S, 3, H, Dh), 2, 0, 3, 1, 4)
        q, k, v = qkv[0], qkv[1], qkv[2]
        scale = Dh ** -0.5
        pos = torch.arange(S)
        off = torch.arange(W) * dil
        idx = pos[:, None] - off[None, :]
        mask = idx >= 0
        idx_c = torch.where(mask, idx, 0).reshape(-1)
        kg = k[:, :, idx_c, :].reshape(B, H, S, W, Dh)
        vg = v[:, :, idx_c, :].reshape(B, H, S, W, Dh)
        logits = torch.einsum("bhsd,bhswd->bhsw", q, kg) * scale
        logits = torch.where(mask[None, None, :, :], logits, -1e9)
        attn = _softmax(logits, axis=-1)
        o = torch.einsum("bhsw,bhswd->bhsd", attn, vg)
        return (lambda x, *d: x.permute(*d))(o, 0, 2, 1, 3).reshape(B, S, D) @ wo

    def _B_ref(x, wqkv, wo):
        B, S, D = x.shape
        H = 32; Dh = D // H
        W, dil = 8, 2
        qkv = (lambda x, *d: x.permute(*d))((x @ wqkv).reshape(B, S, 3, H, Dh), 2, 0, 3, 1, 4)
        q, k, v = qkv[0], qkv[1], qkv[2]
        scale = Dh ** -0.5
        pos = torch.arange(S)
        off = torch.arange(W) * dil
        idx = pos[:, None] - off[None, :]
        mask = idx >= 0
        idx_c = torch.where(mask, idx, 0).reshape(-1)
        kg = k[:, :, idx_c, :].reshape(B, H, S, W, Dh)
        vg = v[:, :, idx_c, :].reshape(B, H, S, W, Dh)
        logits = torch.einsum("bhsd,bhswd->bhsw", q, kg) * scale
        logits = torch.where(mask[None, None, :, :], logits, -1e9)
        attn = _softmax(logits, axis=-1)
        o = torch.einsum("bhsw,bhswd->bhsd", attn, vg)
        return (lambda x, *d: x.permute(*d))(o, 0, 2, 1, 3).reshape(B, S, D) @ wo

    x = A_x
    g = _sigmoid((x * gate_w).sum(-1, keepdims=True))
    a = _A_ref(x, A_wqkv, A_wo)
    b = _B_ref(x, B_wqkv, B_wo)
    return g * a + (1 - g) * b
```

```python
import re
NAME = "gated_mix__sliding_local_dilated__sliding_local_dilated__prompt"

TRANS = ("v_exp_f32", "v_log_f32", "v_rcp_f32", "v_rsq_f32", "v_sqrt_f32", "v_sin_f32", "v_cos_f32")


def regs_of(op):
    op = op.strip()
    op = op.lstrip("-")
    m = re.match(r"^abs\((.*)\)$", op) or re.match(r"^\|(.*)\|$", op)
    if m:
        op = m.group(1)
    m = re.match(r"^([vs])(\d+)$", op)
    if m:
        return {(m.group(1), int(m.group(2)))}
    m = re.match(r"^([vs])\[(\d+):(\d+)\]$", op)
    if m:
        return {(m.group(1), i) for i in range(int(m.group(2)), int(m.group(3)) + 1)}
    if op in ("vcc", "vcc_lo", "vcc_hi"):
        return {("vcc", 0)}
    if op == "m0":
        return {("m0", 0)}
    if op in ("exec", "exec_lo", "exec_hi"):
        return {("exec", 0)}
    return set()


class Ins:
    __slots__ = ("text", "mn", "ops", "kind", "defs", "uses", "a", "b", "c", "region", "ws", "lds", "wide", "data")

    def __init__(self, text, region):
        self.text = text
        self.region = region
        t = text.split(";")[0].strip()
        parts = t.split(None, 1)
        self.mn = parts[0]
        rest = parts[1] if len(parts) > 1 else ""
        ops = []
        depth = 0
        cur = ""
        for ch in rest:
            if ch == "[":
                depth += 1
            if ch == "]":
                depth -= 1
            if ch == "," and depth == 0:
                ops.append(cur.strip())
                cur = ""
            else:
                cur += ch
        if cur.strip():
            ops.append(cur.strip())
        mods = []
        if ops:
            sp = ops[-1].split()
            ops[-1] = sp[0]
            mods = sp[1:]
        self.ops = ops
        mn = self.mn
        self.defs = set()
        self.uses = set()
        self.a = self.b = self.c = set()
        self.lds = False
        self.wide = False
        self.data = set()
        self.ws = 1
        R = [regs_of(o) for o in ops]
        if mn == "s_nop":
            self.kind = "nop"
            self.ws = int(ops[0], 0) + 1
        elif mn.startswith("v_mfma"):
            self.kind = "mfma"
            self.defs = R[0]
            self.a, self.b, self.c = R[1], R[2], R[3]
            self.uses = R[1] | R[2] | R[3]
        elif mn.startswith("v_"):
            self.kind = "valu"
            if mn.startswith("v_permlane") and "swap" in mn:
                self.defs = R[0] | R[1]
                self.uses = R[0] | R[1]
            elif mn.startswith(("v_add_co", "v_sub_co", "v_addc", "v_subb", "v_subrev_co")):
                self.defs = R[0] | R[1]
                for r in R[2:]:
                    self.uses |= r
            else:
                self.defs = R[0]
                for r in R[1:]:
                    self.uses |= r
                if mn.startswith(("v_fmac", "v_mac")):
                    self.uses |= R[0]
                if mn.startswith("v_cndmask") and len(ops) == 3:
                    self.uses |= {("vcc", 0)}
        elif mn.startswith("ds_"):
            self.kind = "ds"
            if mn.startswith(("ds_read", "ds_bpermute", "ds_permute", "ds_swizzle")):
                self.defs = R[0]
                for r in R[1:]:
                    self.uses |= r
            else:
                for r in R:
                    self.uses |= r
        elif mn.startswith(("buffer_", "global_")):
            self.kind = "vmem"
            self.lds = "lds" in mods
            isload = "_load" in mn
            if isload and not self.lds:
                self.defs = R[0]
                for r in R[1:]:
                    self.uses |= r
            else:
                for r in R:
                    self.uses |= r
            if "_store" in mn:
                if mn.startswith("buffer_"):
                    self.data = R[0]
                else:
                    self.data = R[1]
                self.wide = mn.endswith(("x3", "x4"))
        elif mn.startswith("s_"):
            self.kind = "salu"
            if mn.startswith(("s_cmp", "s_cbranch", "s_branch", "s_waitcnt", "s_barrier", "s_endpgm", "s_sleep",
                              "s_setprio", "s_bitcmp")):
                for r in R:
                    self.uses |= r
            else:
                self.defs = R[0] if R else set()
                for r in R[1:]:
                    self.uses |= r
                if "saveexec" in mn:
                    self.defs = self.defs | {("exec", 0)}
        else:
            raise ValueError("unknown instr " + text)


def need(p, c):
    n = 0
    vd = {r for r in p.defs if r[0] == "v"}
    sd = {r for r in p.defs if r[0] in ("s", "vcc")}
    if p.kind == "valu":
        if c.kind == "mfma" and vd & c.uses:
            n = max(n, 2)
        if c.kind == "valu":
            if c.mn.startswith("v_permlane") and vd & c.uses:
                n = max(n, 2)
            if ("dpp" in c.text or "row_" in c.text or "quad_perm" in c.text) and vd & c.uses:
                n = max(n, 2)
            if c.mn.startswith(("v_readfirstlane", "v_readlane")) and vd & c.uses:
                n = max(n, 1)
            if sd & c.uses:
                n = max(n, 4 if c.mn.startswith(("v_readlane", "v_writelane")) else 2)
            if p.mn in TRANS and vd & c.uses:
                n = max(n, 1)
            if ("sdwa" in p.mn or "op_sel" in p.text) and vd & (c.uses | c.defs):
                n = max(n, 1)
            if p.mn.startswith("v_dot") and vd & (c.uses | c.defs):
                n = max(n, 3)
        if c.kind == "vmem" and sd & c.uses:
            n = max(n, 5)
        if c.kind == "salu" and sd & c.uses:
            n = max(n, 1)
        if ("exec", 0) in p.defs:
            n = max(n, 5)
        if p.mn.startswith("v_dot") and c.kind != "valu" and vd & c.uses:
            n = max(n, 3)
    if p.kind == "mfma":
        big = "32x32" in p.mn
        far = 12 if big else 8
        if c.kind == "mfma":
            if vd & (c.a | c.b):
                n = max(n, far)
            if vd & c.c and c.c != p.defs:
                n = max(n, 10 if big else 6)
            if vd & c.defs and c.c != p.defs:
                n = max(n, far)
        elif c.kind in ("valu", "ds", "vmem"):
            if vd & (c.uses | c.defs):
                n = max(n, far)
        if c.kind == "valu" and p.c & c.defs:
            n = max(n, 7 if big else 3)
        if c.kind in ("ds", "vmem") and p.c & c.defs:
            n = max(n, 7 if big else 3)
    if p.kind == "salu":
        if ("m0", 0) in p.defs and c.kind == "vmem" and c.lds:
            n = max(n, 1)
    if p.kind == "vmem" and p.wide:
        if p.data & c.defs:
            n = max(n, 2)
    return n


class Asm:
    def __init__(self):
        self.items = []
        self.nlab = 0
        self.region = 0
        self.nreg = 0
        self.nops = 0

    def label(self, base="L"):
        self.nlab += 1
        return f".{base}_{self.nlab}"

    def skip_begin(self):
        self.nreg += 1
        self.region = self.nreg

    def skip_end(self):
        self.region = 0

    def raw(self, s):
        self.items.append(s)

    def __call__(self, s):
        for l in s.strip("\n").split("\n"):
            l = l.strip()
            if not l or l.startswith(";"):
                continue
            if l.split(";")[0].strip().endswith(":") or l.startswith("."):
                self.items.append(l)
                continue
            self.emit(l)

    def emit(self, l):
        c = Ins(l, self.region)
        dist = 0
        req = 0
        for it in reversed(self.items):
            if isinstance(it, str):
                continue
            if dist >= 14:
                break
            n = need(it, c)
            if n > dist:
                req = max(req, n - dist)
            if it.region == 0 or it.region == c.region:
                dist += it.ws
        if req > 0:
            self.nops += 1
            self.items.append(Ins(f"s_nop {req - 1}", self.region))
        self.items.append(c)

    def text(self):
        out = []
        for it in self.items:
            if isinstance(it, str):
                out.append(it)
            else:
                out.append("    " + it.text)
        return "\n".join(out) + "\n"


def header(launches):
    s = "; gated dual sliding-window attention + output projection (hand-written generator output)\n"
    if len(launches) == 1 and launches[0][0] == NAME + "_kernel":
        k, g, b, l = launches[0]
        s += f"; @launch grid=({g},1,1) block=({b},1,1) lds={l}\n"
    else:
        for k, g, b, l in launches:
            s += f"; @launch kernel={k} grid=({g},1,1) block=({b},1,1) lds={l}\n"
    s += '.amdgcn_target "amdgcn-amd-amdhsa--gfx950"\n.text\n'
    return s


def kernel_open(name):
    return f".globl {name}\n.p2align 8\n.type {name},@function\n{name}:\n"


def kd(name, nvgpr, nsgpr=102, accum=None):
    if accum is None:
        accum = (nvgpr + 3) // 4 * 4
    return f""".p2align 6
.amdhsa_kernel {name}
  .amdhsa_next_free_vgpr {nvgpr}
  .amdhsa_next_free_sgpr {nsgpr}
  .amdhsa_accum_offset {accum}
  .amdhsa_group_segment_fixed_size 0
  .amdhsa_kernarg_size 80
  .amdhsa_user_sgpr_count 2
  .amdhsa_user_sgpr_kernarg_segment_ptr 1
  .amdhsa_system_sgpr_workgroup_id_x 1
  .amdhsa_float_denorm_mode_32 3
  .amdhsa_float_denorm_mode_16_64 3
.end_amdhsa_kernel
"""


def magic(d, maxn):
    for sh in range(8, 31):
        m = -(-(1 << sh) // d)
        if m >= (1 << 24) or m * maxn >= (1 << 32):
            break
        if all((n * m) >> sh == n // d for n in range(maxn + 1)):
            return m, sh
    raise ValueError


def vr(b, n=1):
    return f"v{b}" if n == 1 else f"v[{b}:{b + n - 1}]"


def sr(b, n=1):
    return f"s{b}" if n == 1 else f"s[{b}:{b + n - 1}]"
```

```python
import sys, struct
from asm2 import *

STG = 46080
WOFF = 18432
GOFF = 138240
EX = 147456
EXQ = EX
EXV = EX + 5120
EXD = EX + 10240
LDS_BYTES = 163840
OBR = 128 * 18432
GATE_WS = 2 * OBR
STAMP_WS = 8 << 20
NEG = 0xf149f2ca
SCALE = struct.unpack("<I", struct.pack("<f", 18 ** -0.5))[0]
LOG2E = 0x3fb8aa3b

sW, sH, sP, sRT, sHGB, sBR, sHG, sIDX, sXCD = 3, 4, 5, 6, 7, 8, 9, 10, 11
sJ, sST, sSLW, sE = 12, 13, 14, 15
KA = 16
pAX, pAW, pAO, pBX, pBW, pBO, pGW, pOUT, pDBG, pWS = [KA + 2 * i for i in range(10)]
SX, SW, S5, SWS = 40, 44, 48, 52
sOX, sOW, sO5, sL5, sRS, sRST, sDW, sDG, sT0, sT1, sT2, sHGO = 56, 57, 58, 59, 60, 61, 62, 63, 64, 65, 66, 67
sM0 = 68
sSTAMP = 80
SWO, SOUT = 96, 40


class Gen:
    def __init__(self, fused=False, stamps=False):
        self.fused = fused
        self.stamps = stamps
        self.nst = 0

    def stamp(self, a):
        if self.stamps:
            a(f"s_memrealtime {sr(sSTAMP + 2 * self.nst, 2)}")
            self.nst += 1

    def stamp_store(self, a, base, tmpv):
        if not self.stamps:
            return
        L = a.label("nost")
        a(f"s_cmp_eq_u32 s{sW}, 0\ns_cbranch_scc0 {L}")
        a.skip_begin()
        a("s_waitcnt lgkmcnt(0)")
        a(f"s_mul_i32 s{sT0}, s2, 64\ns_add_u32 s{sT0}, s{sT0}, {base}\nv_mov_b32 v{tmpv}, s{sT0}")
        for i in range(16):
            a(f"v_mov_b32 v{tmpv + 2 + i}, s{sSTAMP + i}")
        a(f"s_mov_b64 exec, 1")
        for i in range(4):
            a(f"global_store_dwordx4 v{tmpv}, {vr(tmpv + 2 + 4 * i, 4)}, {sr(pWS, 2)} offset:{16 * i}")
        a(f"s_mov_b64 exec, -1")
        a.skip_end()
        a(f"{L}:")

    def ids(self, a):
        a(f"""
        s_cmp_ge_u32 s2, 256
        s_cbranch_scc1 .Lend
        s_load_dwordx16 {sr(KA, 16)}, s[0:1], 0
        s_load_dwordx4 {sr(KA + 16, 4)}, s[0:1], 64
        """)
        self.stamp(a)
        a(f"""
        v_lshrrev_b32 v2, 6, v0
        v_and_b32 v1, 63, v0
        v_readfirstlane_b32 s{sW}, v2
        s_and_b32 s{sXCD}, s2, 7
        s_lshr_b32 s{sIDX}, s2, 3
        """)

    def phase1(self, a):
        st = self
        vD = [10, 11, 12, 13, 14, 15]
        vXA, vXL, vXH = [16, 17], [18, 19], [20, 21]
        vWA, vWQ = 22, 23
        vWV = [24, 25, 26, 27]
        vDl, vIsG = 28, 29
        FA, FB = 32, 76
        fr = lambda base: dict(X=[base + 4 * t for t in range(4)], XL=base + 16, XH=base + 20, WQ=base + 24,
                               WK=base + 28, WV=base + 32, WQL=base + 36, WVL=base + 40)
        A_, B_ = fr(FA), fr(FB)
        aQ = [120 + 4 * t for t in range(4)]
        aK = [136 + 4 * t for t in range(4)]
        aV = [152 + 4 * t for t in range(4)]
        aKH, aVH, aQL, aVL, aE = 168, 172, 176, 180, 184
        cOwn, cPrev, cPrev0 = 188, 192, 196
        mO, mP, mQ = 200, 202, 204
        vEW, vEWE, vEQ = 206, 207, 208
        vEV = [209, 210, 211, 212]
        vSO, vSL, vSG = 213, 214, 215
        m27, s27 = magic(27, 2047)

        a(f"""
        s_and_b32 s{sT0}, s{sXCD}, 1
        s_lshl_b32 s{sT0}, s{sT0}, 3
        s_and_b32 s{sT1}, s{sIDX}, 7
        s_add_u32 s{sRT}, s{sT0}, s{sT1}
        s_lshr_b32 s{sT0}, s{sXCD}, 1
        s_lshl_b32 s{sT0}, s{sT0}, 2
        s_lshr_b32 s{sT2}, s{sIDX}, 3
        s_add_u32 s{sHGB}, s{sT0}, s{sT2}
        s_lshl_b32 s{sT2}, s{sT2}, 1
        s_add_u32 s{sST}, s{sT1}, s{sT2}
        s_sub_u32 s{sT0}, s{sST}, 9
        s_cmp_ge_u32 s{sST}, 9
        s_cselect_b32 s{sST}, s{sT0}, s{sST}
        s_mov_b32 s{sRST}, s{sST}
        s_lshr_b32 s{sBR}, s{sHGB}, 3
        s_and_b32 s{sHG}, s{sHGB}, 7
        s_mul_i32 s{sHGO}, s{sHG}, 144
        s_and_b32 s{sH}, s{sW}, 3
        s_lshr_b32 s{sP}, s{sW}, 2
        v_lshrrev_b32 v3, 3, v1
        v_and_b32 v4, 7, v1
        v_xor_b32 v4, v4, v3
        v_mul_u32_u24 v5, 2304, v3
        v_lshl_add_u32 v5, v4, 4, v5
        s_lshl_b32 s{sT0}, s{sRT}, 7
        s_lshl_b32 s{sT1}, s{sW}, 4
        s_add_u32 s{sT1}, s{sT1}, s{sT0}
        s_mul_i32 s{sT1}, s{sT1}, 1152
        v_add_u32 v{vD[0]}, s{sT1}, v5
        v_add_u32 v{vD[1]}, 1152, v{vD[0]}
        s_lshl_b32 s{sSLW}, s{sW}, 10
        s_waitcnt lgkmcnt(0)
        s_mov_b32 s{SX}, s{pAX}
        s_and_b32 s{SX + 1}, s{pAX + 1}, 0xffff
        s_mov_b32 s{SX + 2}, {2048 * 1152}
        s_mov_b32 s{SX + 3}, 0x20000
        s_cmp_eq_u32 s{sBR}, 1
        s_cselect_b32 s{SW}, s{pBW}, s{pAW}
        s_cselect_b32 s{SW + 1}, s{pBW + 1}, s{pAW + 1}
        s_and_b32 s{SW + 1}, s{SW + 1}, 0xffff
        s_mov_b32 s{SW + 2}, {576 * 3456}
        s_mov_b32 s{SW + 3}, 0x20000
        """)
        Lg = a.label("nogate")
        a(f"""
        s_lshl_b32 s{sT0}, s{sHGB}, 3
        s_add_u32 s{sT0}, s{sT0}, s{sW}
        s_cmp_lt_u32 s{sT0}, 5
        s_cbranch_scc0 {Lg}
        """)
        a.skip_begin()
        a(f"""
        v_min_u32 v6, 287, v0
        v_lshlrev_b32 v6, 2, v6
        global_load_dword v30, v6, {sr(pGW, 2)}
        """)
        a.skip_end()
        a(f"{Lg}:")

        def waddr(n, out):
            a(f"""
            v_mul_u32_u24 v6, {m27}, v{n}
            v_lshrrev_b32 v6, {s27}, v6
            v_mul_u32_u24 v7, 27, v6
            v_sub_u32 v7, v{n}, v7
            v_mul_u32_u24 v8, 57, v7
            v_lshrrev_b32 v8, 9, v8
            v_bfe_u32 v9, v6, 1, 2
            v_and_or_b32 v9, v6, 56, v9
            v_and_b32 v6, 1, v6
            v_lshl_or_b32 v9, v6, 2, v9
            v_mul_u32_u24 v9, 3456, v9
            v_lshl_add_u32 v9, v7, 4, v9
            v_mul_u32_u24 v8, 1008, v8
            v_add_u32 v{out}, v9, v8
            """)

        def soffs():
            a(f"""
            s_lshl_b32 s{sOX}, s{sST}, 7
            s_mul_i32 s{sOW}, s{sST}, {64 * 3456}
            s_add_u32 s{sOW}, s{sOW}, s{sHGO}
            s_cmp_lt_u32 s{sW}, 2
            s_cselect_b32 s{sO5}, s{sOX}, s{sOW}
            """)

        def dma(j):
            if j < 2:
                return [f"s_add_u32 m0, s{sSLW}, {8192 * j}",
                        f"buffer_load_dwordx4 v{vD[j]}, {sr(SX, 4)}, s{sOX} offen lds"]
            if j < 5:
                return [f"s_add_u32 m0, s{sSLW}, {WOFF + 8192 * (j - 2)}",
                        f"buffer_load_dwordx4 v{vD[j]}, {sr(SW, 4)}, s{sOW} offen lds"]
            raise ValueError

        def dma5():
            L = a.label("no5")
            a(f"s_cmp_lt_u32 s{sW}, 5\ns_cbranch_scc0 {L}")
            a.skip_begin()
            a(f"s_add_u32 m0, s{sSLW}, s{sL5}")
            a(f"buffer_load_dwordx4 v{vD[5]}, {sr(S5, 4)}, s{sO5} offen lds")
            a.skip_end()
            a(f"{L}:")

        def adv_dma():
            a(f"""
            s_add_u32 s{sST}, s{sST}, 1
            s_cmp_eq_u32 s{sST}, 9
            s_cselect_b32 s{sST}, 0, s{sST}
            s_add_u32 s{sSLW}, s{sSLW}, {STG}
            s_sub_u32 s{sT0}, s{sSLW}, {3 * STG}
            s_cmp_ge_u32 s{sSLW}, {3 * STG}
            s_cselect_b32 s{sSLW}, s{sT0}, s{sSLW}
            """)

        soffs()
        for j in range(2):
            a("\n".join(dma(j)))
        waddr(0, vD[2])
        a("\n".join(dma(2)))
        a(f"v_add_u32 v2, 512, v0")
        waddr(2, vD[3])
        a("\n".join(dma(3)))
        a(f"v_add_u32 v2, 1024, v0")
        waddr(2, vD[4])
        a("\n".join(dma(4)))
        a(f"v_add_u32 v2, 1408, v0")
        waddr(2, vD[5])
        a(f"""
        s_lshl_b32 s{sT0}, s{sRT}, 7
        s_sub_u32 s{sT0}, s{sT0}, 16
        s_max_i32 s{sT0}, s{sT0}, 0
        s_add_u32 s{sT0}, s{sT0}, s{sW}
        s_mul_i32 s{sT0}, s{sT0}, 1152
        v_add_u32 v5, s{sT0}, v5
        s_cmp_lt_u32 s{sW}, 2
        s_cselect_b64 vcc, -1, 0
        s_cselect_b32 s{S5}, s{SX}, s{SW}
        s_cselect_b32 s{S5 + 1}, s{SX + 1}, s{SW + 1}
        s_cselect_b32 s{S5 + 2}, s{SX + 2}, s{SW + 2}
        s_mov_b32 s{S5 + 3}, 0x20000
        s_mov_b32 s{sL5}, {40 * 1024}
        s_cselect_b32 s{sL5}, {16 * 1024}, s{sL5}
        v_cndmask_b32 v{vD[5]}, v{vD[5]}, v5, vcc
        """)
        dma5()
        adv_dma()
        soffs()
        for j in range(5):
            a("\n".join(dma(j)))
        dma5()
        adv_dma()

        a(f"""
        v_lshrrev_b32 v2, 4, v1
        v_and_b32 v3, 15, v1
        v_bfe_u32 v4, v1, 2, 2
        v_and_b32 v5, 3, v1
        v_and_b32 v6, 7, v3
        v_xor_b32 v7, v2, v6
        v_lshlrev_b32 v7, 4, v7
        v_lshl_add_u32 v8, v3, 7, v7
        s_lshl_b32 s{sT0}, s{sP}, 13
        v_add_u32 v{vXA[0]}, s{sT0}, v8
        v_xor_b32 v{vXA[1]}, 64, v{vXA[0]}
        s_lshl_b32 s{sT0}, s{sW}, 11
        v_add_u32 v{vXL[0]}, s{sT0}, v8
        v_xor_b32 v{vXL[1]}, 64, v{vXL[0]}
        v_lshl_add_u32 v8, v6, 7, v7
        s_lshl_b32 s{sT0}, s{sP}, 10
        s_add_u32 s{sT0}, s{sT0}, 16384
        v_add_u32 v{vXH[0]}, s{sT0}, v8
        v_xor_b32 v{vXH[1]}, 64, v{vXH[0]}
        ; W rows: (8g+2r)*432
        v_lshlrev_b32 v6, 2, v2
        v_add_u32 v6, v6, v4
        v_mul_u32_u24 v6, 864, v6
        ; hoff(h) = 36h + (h&1)*4
        s_mul_i32 s{sT0}, s{sH}, 36
        s_and_b32 s{sT1}, s{sH}, 1
        s_lshl_b32 s{sT1}, s{sT1}, 2
        s_add_u32 s{sT0}, s{sT0}, s{sT1}
        s_add_u32 s{sT0}, s{sT0}, {WOFF}
        v_lshl_add_u32 v7, v5, 3, v6
        v_add_u32 v{vWA}, s{sT0}, v7
        v_mul_u32_u24 v7, 72, v5
        v_add3_u32 v{vWQ}, v6, v7, 32
        v_add_u32 v{vWQ}, {WOFF}, v{vWQ}
        v_lshl_add_u32 v7, v2, 3, v4
        v_lshlrev_b32 v7, 3, v7
        s_lshl_b32 s{sT0}, s{sRST}, 9
        s_add_u32 s{sT0}, s{sT0}, {GOFF}
        v_add_u32 v7, s{sT0}, v7
        v_lshrrev_b32 v{vIsG}, 1, v5
        v_cmp_eq_u32 vcc, 1, v{vIsG}
        """)
        for kk in range(2):
            for jj in range(2):
                a(f"""
                v_add_u32 v8, {288 + (32 * kk + jj) * 432}, v{vWQ}
                v_add_u32 v9, {(32 * kk + 4 * jj) * 8}, v7
                v_cndmask_b32 v{vWV[2 * kk + jj]}, v8, v9, vcc
                """)
        a(f"""
        s_lshl_b32 s{sT0}, s{sP}, 1
        s_sub_u32 s{sE}, s{sH}, s{sT0}
        s_mov_b32 s{sJ}, 0
        s_mov_b32 s{sRS}, 0
        """)
        for r in list(range(FB, FB + 44)) + list(range(120, 188)):
            a(f"v_mov_b32 v{r}, 0")

        a(f"""
        v_lshlrev_b32 v6, 2, v2
        v_sub_u32 v6, v3, v6
        v_mov_b32 v9, {NEG}
        """)
        for r in range(4):
            a(f"""
            v_subrev_u32 v7, {r}, v6
            v_cmp_gt_u32 vcc, 8, v7
            v_cmp_gt_i32 {sr(sM0, 2)}, -8, v7
            v_cmp_le_i32 {sr(sM0 + 2, 2)}, 0, v7
            v_cndmask_b32 v{cOwn + r}, v9, 0, vcc
            v_cndmask_b32 v{cPrev + r}, v9, 0, {sr(sM0, 2)}
            v_cndmask_b32 v{216 + r}, 0, -1, {sr(sM0 + 2, 2)}
            """)
        a(f"""
        v_and_b32 v216, 0xffff, v216
        v_and_b32 v217, 0xffff0000, v217
        v_and_b32 v218, 0xffff, v218
        v_and_b32 v219, 0xffff0000, v219
        v_or_b32 v{mO}, v216, v217
        v_or_b32 v{mO + 1}, v218, v219
        v_not_b32 v{mP}, v{mO}
        v_not_b32 v{mP + 1}, v{mO + 1}
        s_cmp_eq_u32 s{sRT}, 0
        s_cselect_b64 vcc, -1, 0
        """)
        for r in range(4):
            a(f"v_cndmask_b32 v{cPrev0 + r}, v{cPrev + r}, v9, vcc")
        a(f"""
        s_and_b32 s{sT0}, s{sH}, 1
        s_cmp_eq_u32 s{sT0}, 0
        s_cselect_b32 s{sM0}, 0xffff, 0
        s_cselect_b32 s{sM0 + 2}, 0, 0xffff
        s_mov_b32 s{sM0 + 1}, 0
        s_mov_b32 s{sM0 + 3}, 0
        v_cndmask_b32 v{mQ}, 0, -1, {sr(sM0, 2)}
        v_cndmask_b32 v{mQ + 1}, 0, -1, {sr(sM0 + 2, 2)}
        s_mul_i32 s{sT0}, s{sP}, 2560
        s_lshl_b32 s{sT1}, s{sH}, 9
        s_add_u32 s{sT1}, s{sT1}, s{sT0}
        s_add_u32 s{sT1}, s{sT1}, {EXQ + 512}
        v_lshlrev_b32 v6, 3, v1
        v_add_u32 v{vEW}, s{sT1}, v6
        s_add_u32 s{sT1}, s{sT0}, {EXQ}
        s_add_u32 s{sT2}, s{sT0}, {EXV}
        s_cmp_eq_u32 s{sE}, 1
        s_cselect_b32 s{sT1}, s{sT2}, s{sT1}
        s_cmp_lt_u32 s{sE}, 2
        s_cselect_b32 s{sT1}, s{sT1}, {EXD}
        v_add_u32 v{vEWE}, s{sT1}, v6
        s_lshr_b32 s{sT1}, s{sH}, 1
        s_lshl_b32 s{sT1}, s{sT1}, 7
        s_add_u32 s{sT1}, s{sT1}, s{sT0}
        s_add_u32 s{sT1}, s{sT1}, {EXQ}
        v_lshlrev_b32 v6, 3, v3
        v_add_u32 v{vEQ}, s{sT1}, v6
        s_lshl_b32 s{sT1}, s{sH}, 4
        v_xor_b32 v6, s{sT1}, v6
        v_lshl_add_u32 v6, v2, 7, v6
        """)
        for t in range(4):
            a(f"v_xor_b32 v7, {32 * t}, v6\nv_add_u32 v{vEV[t]}, s{sT2}, v7")
        a(f"""
        s_mov_b32 s{SWS}, s{pWS}
        s_and_b32 s{SWS + 1}, s{pWS + 1}, 0xffff
        s_mov_b32 s{SWS + 2}, {GATE_WS + 8192}
        s_mov_b32 s{SWS + 3}, 0x20000
        s_lshl_b32 s{sT0}, s{sRT}, 3
        s_lshl_b32 s{sT1}, s{sP}, 2
        s_add_u32 s{sT0}, s{sT0}, s{sT1}
        s_mul_i32 s{sT0}, s{sT0}, 18432
        s_mul_i32 s{sT1}, s{sBR}, {OBR}
        s_add_u32 s{sT0}, s{sT0}, s{sT1}
        s_lshl_b32 s{sT1}, s{sHG}, 11
        s_lshl_b32 s{sT2}, s{sH}, 9
        s_add_u32 s{sT1}, s{sT1}, s{sT2}
        s_add_u32 s{sT1}, s{sT1}, s{sT0}
        v_and_b32 v6, 1, v2
        v_mul_u32_u24 v6, 18432, v6
        v_lshrrev_b32 v7, 1, v2
        v_lshl_add_u32 v6, v7, 8, v6
        v_lshl_add_u32 v6, v3, 4, v6
        v_add_u32 v{vSO}, s{sT1}, v6
        s_lshl_b32 s{sT1}, s{sHG}, 8
        s_lshl_b32 s{sT2}, s{sH}, 2
        s_add_u32 s{sT1}, s{sT1}, s{sT2}
        s_add_u32 s{sT1}, s{sT1}, s{sT0}
        s_add_u32 s{sT1}, s{sT1}, 16384
        v_mul_u32_u24 v6, 18432, v2
        v_lshl_add_u32 v6, v3, 4, v6
        v_add_u32 v{vSL}, s{sT1}, v6
        s_lshl_b32 s{sT1}, s{sRT}, 3
        s_add_u32 s{sT1}, s{sT1}, s{sW}
        s_lshl_b32 s{sT1}, s{sT1}, 6
        s_add_u32 s{sT1}, s{sT1}, {GATE_WS}
        v_lshlrev_b32 v6, 4, v2
        v_add_u32 v{vSG}, s{sT1}, v6
        """)
        Lg2 = a.label("nogate2")
        a(f"""
        s_lshl_b32 s{sT0}, s{sHGB}, 3
        s_add_u32 s{sT0}, s{sT0}, s{sW}
        s_cmp_lt_u32 s{sT0}, 5
        s_cbranch_scc0 {Lg2}
        """)
        a.skip_begin()
        a(f"""
        v_min_u32 v6, 287, v0
        v_lshlrev_b32 v6, 4, v6
        v_mov_b32 v217, 0
        v_mov_b32 v219, 0
        s_waitcnt vmcnt(12)
        v_and_b32 v216, 0xffff, v30
        v_lshrrev_b32 v218, 16, v30
        ds_write_b128 v6, v[216:219] offset:{GOFF - 2 * STG}
        """.replace("v_lshlrev_b32 v6, 4, v6", f"v_lshlrev_b32 v6, 4, v6\nv_add_u32 v6, {2 * STG}, v6"))
        a.skip_end()
        a(f"{Lg2}:")
        st.stamp(a)

        def reads(F, kk):
            o = lambda sec, jj: (32 * kk + jj) * 432 + sec * 144
            L = []
            tr = lambda dst, adr, off: f"ds_read_b64_tr_b16 {vr(dst, 2)}, v{adr} offset:{off}"
            L += [tr(F['WQ'] + 2 * jj, vWA, o(0, jj)) for jj in range(2)]
            L += [f"ds_read_b128 {vr(F['X'][t], 4)}, v{vXA[kk]} offset:{2048 * t}" for t in range(4)]
            L += [tr(F['WK'] + 2 * jj, vWA, o(1, jj)) for jj in range(2)]
            L += [f"ds_read_b128 {vr(F['XH'], 4)}, v{vXH[kk]}"]
            L += [tr(F['WV'] + 2 * jj, vWA, o(2, jj)) for jj in range(2)]
            L += [f"ds_read_b128 {vr(F['XL'], 4)}, v{vXL[kk]}"]
            L += [tr(F['WQL'] + 2 * jj, vWQ, o(0, jj)) for jj in range(2)]
            L += [tr(F['WVL'] + 2 * jj, vWV[2 * kk + jj], 0) for jj in range(2)]
            return L

        mf = lambda d, x, y: f"v_mfma_f32_16x16x32_bf16 {vr(d, 4)}, {vr(x, 4)}, {vr(y, 4)}, {vr(d, 4)}"

        def mfmas(F):
            L = [mf(aQ[t], F['WQ'], F['X'][t]) for t in range(4)]
            L += [mf(aK[t], F['WK'], F['X'][t]) for t in range(4)]
            L += [mf(aKH, F['WK'], F['XH'])]
            L += [mf(aV[t], F['X'][t], F['WV']) for t in range(4)]
            L += [mf(aVH, F['XH'], F['WV'])]
            L += [mf(aQL, F['WQL'], F['XL']), mf(aVL, F['XL'], F['WVL'])]
            return L

        def extra(F):
            L1, L2 = a.label("e"), a.label("e")
            a(f"s_cmp_eq_u32 s{sE}, 0\ns_cbranch_scc0 {L1}")
            a.skip_begin()
            a(mf(aE, F['WQL'], F['XH']))
            a.skip_end()
            a(f"{L1}:\ns_cmp_eq_u32 s{sE}, 1\ns_cbranch_scc0 {L2}")
            a.skip_begin()
            a(mf(aE, F['XH'], F['WVL']))
            a.skip_end()
            a(f"{L2}:")

        Lw5, Lw0, Lwd = a.label("w5"), a.label("w0"), a.label("wd")
        Lnd, Lnd2 = a.label("nodma"), a.label("nodma")
        a(".Lloop:")
        a(f"""
        s_cmp_eq_u32 s{sJ}, 8
        s_cbranch_scc1 {Lw0}
        s_cmp_lt_u32 s{sW}, 5
        s_cbranch_scc0 {Lw5}
        s_waitcnt vmcnt(6)
        s_branch {Lwd}
        {Lw5}:
        s_waitcnt vmcnt(5)
        s_branch {Lwd}
        {Lw0}:
        s_waitcnt vmcnt(0)
        {Lwd}:
        s_waitcnt lgkmcnt(0)
        s_barrier
        """)
        M = mfmas(B_)
        R = reads(A_, 0)
        for n in range(8):
            a(M[n])
            a(R[2 * n])
            a(R[2 * n + 1])
        a(f"s_cmp_lt_u32 s{sJ}, 7\ns_cbranch_scc0 {Lnd}")
        a.skip_begin()
        soffs()
        for n in range(8, 13):
            a(M[n])
            a("\n".join(dma(n - 8)))
        a.skip_end()
        dma5_inline = True
        L5 = a.label("no5")
        a.skip_begin()
        a(f"s_cmp_lt_u32 s{sW}, 5\ns_cbranch_scc0 {L5}")
        a(f"s_add_u32 m0, s{sSLW}, s{sL5}")
        a(f"buffer_load_dwordx4 v{vD[5]}, {sr(S5, 4)}, s{sO5} offen lds")
        a(f"{L5}:")
        adv_dma()
        a(f"s_branch {Lnd2}")
        a.skip_end()
        a(f"{Lnd}:")
        a.skip_begin()
        for n in range(8, 13):
            a(M[n])
        a.skip_end()
        a(f"{Lnd2}:")
        for n in range(13, 16):
            a(M[n])
        extra(B_)
        a("s_waitcnt lgkmcnt(0)")
        M = mfmas(A_)
        R = reads(B_, 1)
        for n in range(8):
            a(M[n])
            a(R[2 * n])
            a(R[2 * n + 1])
        upd = f"""
        s_mov_b32 s{sDW}, {STG}
        s_cmp_eq_u32 s{sRS}, 2
        s_cselect_b32 s{sDW}, {(-2 * STG) & 0xffffffff}, s{sDW}
        s_cselect_b32 s{sRS}, -1, s{sRS}
        s_add_u32 s{sRS}, s{sRS}, 1
        s_movk_i32 s{sDG}, 512
        s_cmp_eq_u32 s{sRST}, 8
        s_cselect_b32 s{sDG}, {(-4096) & 0xffffffff}, s{sDG}
        s_cselect_b32 s{sRST}, -1, s{sRST}
        s_add_u32 s{sRST}, s{sRST}, 1
        s_sub_u32 s{sDG}, s{sDG}, s{sDW}
        v_mul_i32_i24 v{vDl}, s{sDG}, v{vIsG}
        v_add_u32 v{vDl}, s{sDW}, v{vDl}
        """.strip().split("\n")
        upd += [f"v_add_u32 v{r}, s{sDW}, v{r}" for r in vXA + vXL + vXH + [vWA, vWQ]]
        upd += [f"v_add_u32 v{r}, v{vDl}, v{r}" for r in vWV]
        per = (len(upd) + 7) // 8
        for n in range(8, 16):
            a(M[n])
            for u in upd[(n - 8) * per:(n - 7) * per]:
                a(u)
        extra(A_)
        a(f"""
        s_add_u32 s{sJ}, s{sJ}, 1
        s_cmp_lt_u32 s{sJ}, 9
        s_cbranch_scc1 .Lloop
        s_waitcnt lgkmcnt(0)
        """)
        st.stamp(a)
        M = mfmas(B_)
        a(M[14])
        a(M[15])
        extra(B_)
        for n in range(0, 6):
            a(M[n])
        pk = lambda d, x: f"v_cvt_pk_bf16_f32 v{d}, v{x}, v{x + 1}"
        T = 32
        a(f"""
        {pk(T, aQL)}
        {pk(T + 1, aQL + 2)}
        {pk(T + 2, aVL)}
        {pk(T + 3, aVL + 2)}
        {pk(T + 4, aE)}
        {pk(T + 5, aE + 2)}
        """)
        a(M[6])
        a(f"ds_write_b64 v{vEW}, {vr(T, 2)}")
        a(M[7])
        a(f"ds_write_b64 v{vEW}, {vr(T + 2, 2)} offset:{EXV - EXQ}")
        a(M[8])
        a(f"ds_write_b64 v{vEWE}, {vr(T + 4, 2)}")
        for n in range(9, 14):
            a(M[n])
        Lg3 = a.label("nogate3")
        sc = " sc1" if st.fused else ""
        a(f"s_cmp_eq_u32 s{sHGB}, 0\ns_cbranch_scc0 {Lg3}")
        a.skip_begin()
        a(f"""
        s_mov_b32 s{sM0}, 0x01000100
        s_mov_b32 s{sM0 + 1}, 0x01000100
        s_mov_b64 exec, {sr(sM0, 2)}
        buffer_store_dwordx4 {vr(aVL, 4)}, v{vSG}, {sr(SWS, 4)}, 0 offen{sc}
        s_mov_b64 exec, -1
        """)
        a.skip_end()
        a(f"{Lg3}:")
        Qf = [40 + 4 * t for t in range(4)]
        Kf = {t: 56 + 4 * (t + 1) for t in range(-1, 4)}
        Vp = {t: 216 + 2 * (3 - t) for t in range(-1, 4)}
        VLf = [226 + 4 * t for t in range(4)]
        for t in range(4):
            a(pk(Qf[t], aQ[t]))
            a(pk(Qf[t] + 1, aQ[t] + 2))
        a("s_waitcnt lgkmcnt(0)\ns_barrier")
        for t in range(4):
            a(f"ds_read_b64 {vr(Qf[t] + 2, 2)}, v{vEQ} offset:{(t + 1) * 512}")
        for t in range(-1, 4):
            a(f"ds_read_b64 {vr(Kf[t] + 2, 2)}, v{vEQ} offset:{(t + 1) * 512 + 256}")
        for t in range(4):
            a(pk(Kf[t], aK[t]))
            a(pk(Kf[t] + 1, aK[t] + 2))
        a(pk(Kf[-1], aKH))
        a(pk(Kf[-1] + 1, aKH + 2))
        a("s_waitcnt lgkmcnt(5)")
        for t in range(4):
            a(f"v_and_b32 v{Qf[t] + 2}, v{mQ}, v{Qf[t] + 2}")
            a(f"v_and_b32 v{Qf[t] + 3}, v{mQ + 1}, v{Qf[t] + 3}")
        a("s_waitcnt lgkmcnt(0)")
        for t in range(4):
            a(f"ds_read_b64 {vr(VLf[t], 2)}, v{vEV[t]} offset:{(t + 1) * 512}")
            a(f"ds_read_b64 {vr(VLf[t] + 2, 2)}, v{vEV[t]} offset:{t * 512}")
        So = [76 + 4 * t for t in range(4)]
        Sp = [92 + 4 * t for t in range(4)]
        mfc = lambda d, x, y, c: f"v_mfma_f32_16x16x32_bf16 {vr(d, 4)}, {vr(x, 4)}, {vr(y, 4)}, {c}"
        for t in range(4):
            a(mfc(So[t], Kf[t], Qf[t], vr(cOwn, 4)))
            a(mfc(Sp[t], Kf[t - 1], Qf[t], vr(cPrev0 if t == 0 else cPrev, 4)))
        for t in range(4):
            a(pk(Vp[t], aV[t]))
            a(pk(Vp[t] + 1, aV[t] + 2))
        a(pk(Vp[-1], aVH))
        a(pk(Vp[-1] + 1, aVH + 2))
        a(f"s_mov_b32 s{sT0}, {SCALE}\ns_mov_b32 s{sT1}, {LOG2E}")
        Pk = [120 + 2 * t for t in range(4)]
        Mx = [128 + t for t in range(4)]
        Bc = [132 + t for t in range(4)]
        T4 = range(4)
        for r in range(4):
            for t in T4:
                a(f"v_max_f32 v{So[t] + r}, v{So[t] + r}, v{Sp[t] + r}")

        def rnd():
            for t in T4:
                a(pk(Pk[t], So[t]))
                a(pk(Pk[t] + 1, So[t] + 2))
            for t in T4:
                a(f"v_lshlrev_b32 v{So[t]}, 16, v{Pk[t]}")
                a(f"v_and_b32 v{So[t] + 1}, 0xffff0000, v{Pk[t]}")
                a(f"v_lshlrev_b32 v{So[t] + 2}, 16, v{Pk[t] + 1}")
                a(f"v_and_b32 v{So[t] + 3}, 0xffff0000, v{Pk[t] + 1}")
        rnd()
        for t in T4:
            for r in range(4):
                a(f"v_mul_f32 v{So[t] + r}, s{sT0}, v{So[t] + r}")
        rnd()
        for t in T4:
            a(f"v_max3_f32 v{Mx[t]}, v{So[t]}, v{So[t] + 1}, v{So[t] + 2}")
        for t in T4:
            a(f"v_max_f32 v{Mx[t]}, v{Mx[t]}, v{So[t] + 3}")

        def reduce_bcast(op, mid):
            a(f"""
            v_permlane16_swap_b32 v{Mx[0]}, v{Mx[1]}
            v_permlane16_swap_b32 v{Mx[2]}, v{Mx[3]}
            {op} v{Mx[0]}, v{Mx[0]}, v{Mx[1]}
            {op} v{Mx[2]}, v{Mx[2]}, v{Mx[3]}
            v_permlane32_swap_b32 v{Mx[0]}, v{Mx[2]}
            {op} v{Bc[0]}, v{Mx[0]}, v{Mx[2]}
            """)
            a(mid)
            a(f"""
            v_mov_b32 v{Bc[2]}, v{Bc[0]}
            v_permlane32_swap_b32 v{Bc[0]}, v{Bc[2]}
            v_mov_b32 v{Bc[1]}, v{Bc[0]}
            v_mov_b32 v{Bc[3]}, v{Bc[2]}
            v_permlane16_swap_b32 v{Bc[0]}, v{Bc[1]}
            v_permlane16_swap_b32 v{Bc[2]}, v{Bc[3]}
            """)
        reduce_bcast("v_max_f32", f"v_mul_f32 v{Bc[0]}, s{sT1}, v{Bc[0]}")
        for t in T4:
            for r in range(4):
                a(f"v_fma_f32 v{So[t] + r}, v{So[t] + r}, s{sT1}, -v{Bc[t]}")
        for t in T4:
            for r in range(4):
                a(f"v_exp_f32 v{So[t] + r}, v{So[t] + r}")
        for t in T4:
            a(f"v_add_f32 v{Mx[t]}, v{So[t]}, v{So[t] + 1}")
            a(f"v_add_f32 v{Sp[t]}, v{So[t] + 2}, v{So[t] + 3}")
        for t in T4:
            a(f"v_add_f32 v{Mx[t]}, v{Mx[t]}, v{Sp[t]}")
        reduce_bcast("v_add_f32", f"v_rcp_f32 v{Bc[0]}, v{Bc[0]}")
        for t in T4:
            for r in range(4):
                a(f"v_mul_f32 v{So[t] + r}, v{So[t] + r}, v{Bc[t]}")
        Pf = Sp
        for t in T4:
            a(pk(Pk[t], So[t]))
            a(pk(Pk[t] + 1, So[t] + 2))
        for t in T4:
            a(f"v_and_b32 v{Pf[t]}, v{mO}, v{Pk[t]}")
            a(f"v_and_b32 v{Pf[t] + 1}, v{mO + 1}, v{Pk[t] + 1}")
            a(f"v_and_b32 v{Pf[t] + 2}, v{mP}, v{Pk[t]}")
            a(f"v_and_b32 v{Pf[t] + 3}, v{mP + 1}, v{Pk[t] + 1}")
        a("s_waitcnt lgkmcnt(0)")
        Om = [136 + 4 * t for t in range(4)]
        Ol = [152 + 4 * t for t in range(4)]
        for t in T4:
            a(mfc(Om[t], Vp[t], Pf[t], "0"))
        for t in T4:
            a(mfc(Ol[t], VLf[t], Pf[t], "0"))
        Op = 168
        for t in T4:
            a(pk(Op + 2 * t, Om[t]))
            a(pk(Op + 2 * t + 1, Om[t] + 2))
        for q in range(2):
            a(f"v_permlane16_swap_b32 v{Op + 4 * q}, v{Op + 4 * q + 2}")
            a(f"v_permlane16_swap_b32 v{Op + 4 * q + 1}, v{Op + 4 * q + 3}")
        a(f"s_mov_b32 s{sT0}, {2 * 18432}")
        a(f"buffer_store_dwordx4 {vr(Op, 4)}, v{vSO}, {sr(SWS, 4)}, 0 offen{sc}")
        a(f"buffer_store_dwordx4 {vr(Op + 4, 4)}, v{vSO}, {sr(SWS, 4)}, s{sT0} offen{sc}")
        a(f"""
        s_mov_b32 s{sM0}, 0xffff0000
        s_mov_b32 s{sM0 + 1}, 0
        s_mov_b32 s{sM0 + 2}, 0
        s_mov_b32 s{sM0 + 3}, 0xffff
        s_mov_b32 s{sM0 + 4}, 0
        s_mov_b32 s{sM0 + 5}, 0xffff0000
        """)
        for t in T4:
            a(pk(176 + t, Ol[t]))
        for t in range(1, 4):
            a(f"v_cndmask_b32 v176, v176, v{176 + t}, {sr(sM0 + 2 * (t - 1), 2)}")
        a(f"buffer_store_dword v176, v{vSL}, {sr(SWS, 4)}, 0 offen{sc}")
        st.stamp(a)

    def phase2_setup(self, a):
        a(f"""
        s_mul_i32 s{sT0}, s{sXCD}, 29
        s_min_u32 s{sT1}, s{sXCD}, 2
        s_add_u32 s{sT0}, s{sT0}, s{sT1}
        s_add_u32 s{sT0}, s{sT0}, s{sIDX}
        s_cmp_lt_u32 s{sXCD}, 2
        s_cselect_b32 s{sT1}, 30, 29
        s_cmp_lt_u32 s{sIDX}, s{sT1}
        s_cbranch_scc0 .Lend
        s_mul_i32 s6, s{sT0}, 57
        s_lshr_b32 s6, s6, 9
        s_mul_i32 s{sT1}, s6, 9
        s_sub_u32 s7, s{sT0}, s{sT1}
        s_and_b32 s4, s{sW}, 3
        s_lshr_b32 s5, s{sW}, 2
        """)

    def phase2(self, a):
        st = self
        sKQ, sNH, sGRP, sCT = 4, 5, 6, 7
        assert all((t * 57) >> 9 == t // 9 for t in range(234))
        sc = " sc1" if st.fused else ""
        a(f"""
        s_waitcnt lgkmcnt(0)
        s_cmp_eq_u32 s{sNH}, 1
        s_cselect_b32 s{SWO}, s{pBO}, s{pAO}
        s_cselect_b32 s{SWO + 1}, s{pBO + 1}, s{pAO + 1}
        s_and_b32 s{SWO + 1}, s{SWO + 1}, 0xffff
        s_mov_b32 s{SWO + 2}, {576 * 1152}
        s_mov_b32 s{SWO + 3}, 0x20000
        v_lshrrev_b32 v2, 3, v1
        v_and_b32 v3, 7, v1
        ; sw = ((j>>1)&1) | ((g'&1)<<1)
        v_bfe_u32 v4, v2, 1, 1
        s_and_b32 s{sT0}, s{sKQ}, 1
        s_lshl_b32 s{sT1}, s{sT0}, 1
        v_or_b32 v4, s{sT1}, v4
        v_lshrrev_b32 v5, 1, v3
        v_xor_b32 v5, v5, v4
        v_and_b32 v6, 1, v3
        v_lshlrev_b32 v6, 4, v6
        v_lshl_add_u32 v6, v5, 5, v6
        s_lshl_b32 s{sT1}, s{sCT}, 7
        v_add_u32 v6, s{sT1}, v6
        s_lshr_b32 s{sT1}, s{sKQ}, 1
        s_mul_i32 s{sT1}, s{sT1}, 20
        s_lshl_b32 s{sT0}, s{sT0}, 3
        s_add_u32 s{sT1}, s{sT1}, s{sT0}
        v_add_u32 v7, s{sT1}, v2
        v_mul_u32_u24 v7, 1152, v7
        v_add_u32 v10, v7, v6
        v_lshrrev_b32 v7, 1, v2
        v_mul_u32_u24 v8, 18, v7
        v_and_b32 v7, 1, v7
        v_xor_b32 v7, 1, v7
        v_lshl_add_u32 v8, v7, 4, v8
        v_and_b32 v7, 1, v2
        v_add_u32 v8, v8, v7
        s_mul_i32 s{sT1}, s{sKQ}, 72
        v_add_u32 v8, s{sT1}, v8
        v_mul_u32_u24 v8, 1152, v8
        v_add_u32 v11, v8, v6
        s_mul_i32 s{sT2}, s{sNH}, 73728
        s_lshl_b32 s{sT0}, s{sKQ}, 10
        s_add_u32 s{sT2}, s{sT2}, s{sT0}
        """)
        for ks in range(18):
            so = ks * 36 * 1152 if ks < 16 else (ks - 16) * 288 * 1152
            a(f"s_add_u32 m0, s{sT2}, {ks * 4096}")
            a(f"s_mov_b32 s{sT0}, {so}")
            a(f"buffer_load_dwordx4 v{10 if ks < 16 else 11}, {sr(SWO, 4)}, s{sT0} offen lds")
        st.phase2_main(a)

    def phase2_main(self, a):
        st = self
        sKQ, sNH, sGRP, sCT = 4, 5, 6, 7
        sc = " sc1" if st.fused else ""
        OF = 64
        ACC = 172
        WF = [220, 228, 236, 244]
        vA = [12, 13, 14, 15]
        vG = [16, 17, 18]
        a(f"""
        s_mov_b32 s{SWS}, s{pWS}
        s_and_b32 s{SWS + 1}, s{pWS + 1}, 0xffff
        s_mov_b32 s{SWS + 2}, {GATE_WS + 8192}
        s_mov_b32 s{SWS + 3}, 0x20000
        v_lshlrev_b32 v20, 4, v1
        s_mul_i32 s8, s{sGRP}, 5
        s_mul_i32 s{sT0}, s{sNH}, 3
        s_add_u32 s8, s8, s{sT0}
        s_lshr_b32 s{sT0}, s{sKQ}, 1
        s_mul_i32 s{sT0}, s{sT0}, {OBR}
        s_and_b32 s{sT1}, s{sKQ}, 1
        s_mul_i32 s{sT1}, s{sT1}, 9216
        s_add_u32 s9, s{sT0}, s{sT1}
        """)
        st.p2_wait(a)
        Lsk = a.label("n2")
        for n in range(3):
            a(f"""
            s_add_u32 s{12 + n}, s8, {n}
            s_min_u32 s{12 + n}, s{12 + n}, 127
            s_mul_i32 s{56 + n}, s{12 + n}, 18432
            s_add_u32 s{56 + n}, s{56 + n}, s9
            s_add_u32 s{59 + n}, s{56 + n}, 4096
            s_add_u32 s{62 - 0 + n + 6}, s{56 + n}, 8192
            """)
        so = lambda n, ks: f"s{[56, 59, 68][ks // 4] + n}"
        for ks in range(9):
            for n in range(2):
                a(f"buffer_load_dwordx4 {vr(OF + (n * 9 + ks) * 4, 4)}, v20, {sr(SWS, 4)}, {so(n, ks)} offen offset:{(ks % 4) * 1024}{sc}")
        a(f"s_cmp_eq_u32 s{sNH}, 0\ns_cbranch_scc0 {Lsk}")
        a.skip_begin()
        for ks in range(9):
            a(f"buffer_load_dwordx4 {vr(OF + (18 + ks) * 4, 4)}, v20, {sr(SWS, 4)}, {so(2, ks)} offen offset:{(ks % 4) * 1024}{sc}")
        a.skip_end()
        a(f"{Lsk}:")
        a(f"v_and_b32 v3, 15, v1\nv_lshrrev_b32 v2, 4, v1\nv_lshlrev_b32 v21, 2, v3")
        for n in range(3):
            a(f"""
            s_lshl_b32 s{sT0}, s{12 + n}, 6
            s_add_u32 s{sT0}, s{sT0}, {GATE_WS}
            buffer_load_dword v{vG[n]}, v21, {sr(SWS, 4)}, s{sT0} offen{sc}
            """)
        a(f"""
        v_bfe_u32 v4, v1, 2, 2
        v_and_b32 v5, 3, v1
        v_lshl_add_u32 v6, v2, 3, v4
        v_lshlrev_b32 v6, 7, v6
        v_lshl_add_u32 v6, v5, 3, v6
        v_lshrrev_b32 v7, 1, v4
        v_and_b32 v8, 1, v2
        v_lshl_or_b32 v7, v8, 1, v7
        v_xor_b32 v7, s{sKQ}, v7
        s_lshr_b32 s{sT0}, s{sKQ}, 1
        s_mul_i32 s{sT0}, s{sT0}, 73728
        s_and_b32 s{sT1}, s{sKQ}, 1
        s_mul_i32 s{sT1}, s{sT1}, 36864
        s_add_u32 s{sT0}, s{sT0}, s{sT1}
        v_add_u32 v6, s{sT0}, v6
        """)
        for u in range(4):
            a(f"v_xor_b32 v8, {u}, v7\nv_lshl_add_u32 v{vA[u]}, v8, 5, v6")
        for r in range(ACC, ACC + 48):
            a(f"v_mov_b32 v{r}, 0")
        if not st.fused:
            La, Lb = a.label("wv"), a.label("wv")
            a(f"""
            s_cmp_eq_u32 s{sNH}, 0
            s_cbranch_scc0 {La}
            s_waitcnt vmcnt(30)
            s_branch {Lb}
            {La}:
            s_waitcnt vmcnt(21)
            {Lb}:
            s_barrier
            """)
        st.stamp(a)
        Lp1, Lpd = a.label("p2b"), a.label("p2d")
        a(f"s_cmp_eq_u32 s{sNH}, 0\ns_cbranch_scc0 {Lp1}")
        for nn in (3, 2):
            if nn == 2:
                a(f"{Lp1}:")
            WB = lambda ks, u: 220 + ((ks & 1) * 4 + u) * 4
            def rd(ks):
                return [f"ds_read_b64_tr_b16 {vr(WB(ks, u) + 2 * jj, 2)}, v{vA[u]} offset:{ks * 4096 + jj * 512}"
                        for u in range(4) for jj in range(2)]
            for x in rd(0):
                a(x)
            for ks in range(9):
                if ks < 8:
                    for x in rd(ks + 1):
                        a(x)
                    a("s_waitcnt lgkmcnt(8)")
                else:
                    a("s_waitcnt lgkmcnt(0)")
                for n in range(nn):
                    if n < 2:
                        pos = ks * 2 + n
                    else:
                        pos = 18 + ks
                    tot = (27 if nn == 3 else 18) + 3
                    a(f"s_waitcnt vmcnt({tot - 1 - pos})")
                    for u in range(4):
                        d = ACC + (n * 4 + u) * 4
                        a(f"v_mfma_f32_16x16x32_bf16 {vr(d, 4)}, {vr(WB(ks, u), 4)}, {vr(OF + (n * 9 + ks) * 4, 4)}, {vr(d, 4)}")
            if nn == 3:
                a(f"s_branch {Lpd}")
        a(f"{Lpd}:")
        st.stamp(a)
        a(f"""
        s_nop 7
        s_barrier
        s_mul_i32 s{sT0}, s{sNH}, {3 * 16384}
        s_lshl_b32 s{sT1}, s{sKQ}, 12
        s_add_u32 s{sT1}, s{sT1}, s{sT0}
        """)
        for u in range(1, 4):
            a(f"""
            s_xor_b32 s{sT2}, s{sKQ}, {u}
            s_lshl_b32 s{60 + u}, s{sT2}, 10
            s_add_u32 s{60 + u}, s{60 + u}, s{sT1}
            v_add_u32 v{23 + u}, s{60 + u}, v20
            s_lshl_b32 s{sT2}, s{sT2}, 12
            s_add_u32 s{sT2}, s{sT2}, s{sT0}
            s_lshl_b32 s{70 + u}, s{sKQ}, 10
            s_add_u32 s{sT2}, s{sT2}, s{70 + u}
            v_add_u32 v{27 + u}, s{sT2}, v20
            """)
        L3 = a.label("x3")
        for n in range(3):
            if n == 2:
                a(f"s_cmp_eq_u32 s{sNH}, 0\ns_cbranch_scc0 {L3}")
                a.skip_begin()
            for u in range(1, 4):
                a(f"ds_write_b128 v{23 + u}, {vr(ACC + (n * 4 + u) * 4, 4)} offset:{n * 16384}")
            if n == 2:
                a.skip_end()
                a(f"{L3}:")
        a("s_waitcnt vmcnt(0)")
        a(f"s_mov_b32 s{sT2}, {LOG2E}")
        a(f"s_cmp_lt_u32 s{sKQ}, 2\ns_cselect_b64 vcc, -1, 0")
        cS, cO = [32, 33, 34], [35, 36, 37]
        for n in range(3):
            g = vG[n]
            a(f"""
            v_cvt_pk_bf16_f32 v{g}, v{g}, v{g}
            v_lshlrev_b32 v{g}, 16, v{g}
            v_mul_f32 v{g}, s{sT2}, v{g}
            v_exp_f32 v{g}, -v{g}
            v_add_f32 v{g}, 1.0, v{g}
            v_rcp_f32 v{g}, v{g}
            v_cvt_pk_bf16_f32 v{g}, v{g}, v{g}
            v_lshlrev_b32 v{g}, 16, v{g}
            v_sub_f32 v38, 1.0, v{g}
            v_cvt_pk_bf16_f32 v38, v38, v38
            v_lshlrev_b32 v38, 16, v38
            v_cndmask_b32 v{cS[n]}, v38, v{g}, vcc
            v_cndmask_b32 v{cO[n]}, v{g}, v38, vcc
            """)
        a(f"""
        s_mov_b32 s{SOUT}, s{pOUT}
        s_and_b32 s{SOUT + 1}, s{pOUT + 1}, 0xffff
        s_mov_b32 s{SOUT + 2}, {2048 * 1152}
        s_mov_b32 s{SOUT + 3}, 0x20000
        v_mul_u32_u24 v39, 2304, v3
        v_lshl_add_u32 v39, v2, 3, v39
        s_lshl_b32 s{sT0}, s{sCT}, 7
        s_lshl_b32 s{sT1}, s{sKQ}, 5
        s_add_u32 s{sT0}, s{sT0}, s{sT1}
        v_add_u32 v39, s{sT0}, v39
        """)
        for n in range(3):
            a(f"""
            s_add_u32 s{sT2}, s8, {n}
            s_lshr_b32 s{sT0}, s{sT2}, 3
            s_lshl_b32 s{sT0}, s{sT0}, 7
            s_and_b32 s{sT1}, s{sT2}, 3
            s_lshl_b32 s{sT1}, s{sT1}, 5
            s_add_u32 s{sT0}, s{sT0}, s{sT1}
            s_bfe_u32 s{sT1}, s{sT2}, 0x10002
            s_add_u32 s{sT0}, s{sT0}, s{sT1}
            s_mul_i32 s{56 + n}, s{sT0}, 1152
            s_mov_b32 s{12 + n}, s{sT2}
            """)
        a("s_waitcnt lgkmcnt(0)\ns_barrier")
        RB = OF
        L4 = a.label("x4")
        for n in range(3):
            if n == 2:
                a(f"s_cmp_eq_u32 s{sNH}, 0\ns_cbranch_scc0 {L4}")
                a.skip_begin()
            for u in range(1, 4):
                a(f"ds_read_b128 {vr(RB + (n * 4 + u) * 4, 4)}, v{27 + u} offset:{n * 16384}")
            if n == 2:
                a.skip_end()
                a(f"{L4}:")
        a("s_waitcnt lgkmcnt(0)")
        for n in range(3):
            Ln = a.label("fin")
            lim = 128
            if n == 2:
                a(f"s_cmp_eq_u32 s{sNH}, 0\ns_cbranch_scc0 {Ln}")
            a(f"s_cmp_lt_u32 s{12 + n}, 128\ns_cbranch_scc0 {Ln}")
            a.skip_begin()
            own = ACC + n * 16
            r1, r2, r3 = [RB + (n * 4 + u) * 4 for u in (1, 2, 3)]
            for r in range(4):
                a(f"v_add_f32 v{own + r}, v{own + r}, v{r1 + r}")
                a(f"v_add_f32 v{r2 + r}, v{r2 + r}, v{r3 + r}")
            P = 40

            def rnd(base):
                a(f"""
                v_cvt_pk_bf16_f32 v{P}, v{base}, v{base + 1}
                v_cvt_pk_bf16_f32 v{P + 1}, v{base + 2}, v{base + 3}
                v_lshlrev_b32 v{base}, 16, v{P}
                v_and_b32 v{base + 1}, 0xffff0000, v{P}
                v_lshlrev_b32 v{base + 2}, 16, v{P + 1}
                v_and_b32 v{base + 3}, 0xffff0000, v{P + 1}
                """)
            rnd(own)
            rnd(r2)
            for r in range(4):
                a(f"v_mul_f32 v{own + r}, v{own + r}, v{cS[n]}")
                a(f"v_mul_f32 v{r2 + r}, v{r2 + r}, v{cO[n]}")
            rnd(own)
            rnd(r2)
            for r in range(4):
                a(f"v_add_f32 v{own + r}, v{own + r}, v{r2 + r}")
            a(f"""
            v_cvt_pk_bf16_f32 v{44 + 2 * n}, v{own}, v{own + 1}
            v_cvt_pk_bf16_f32 v{45 + 2 * n}, v{own + 2}, v{own + 3}
            buffer_store_dwordx2 {vr(44 + 2 * n, 2)}, v39, {sr(SOUT, 4)}, s{56 + n} offen
            """)
            a.skip_end()
            a(f"{Ln}:")
        st.stamp(a)

    def p2_wait(self, a):
        pass

    def build(self):
        if not self.fused:
            K1, K2 = "p1_kernel", "p2_kernel"
            a = Asm()
            self.ids(a)
            self.phase1(a)
            self.stamp_store(a, STAMP_WS, 32)
            a(".Lend:\ns_endpgm")
            t1 = a.text()
            b = Asm()
            b.nlab = 1000
            self.nst = 0
            self.ids(b)
            self.phase2_setup(b)
            self.phase2(b)
            self.stamp_store(b, STAMP_WS + 65536, 32)
            b(".Lend:\ns_endpgm")
            t2 = b.text().replace(".Lend", ".Lend2")
            s = header([(K1, 256, 512, LDS_BYTES), (K2, 256, 512, LDS_BYTES)])
            s += kernel_open(K1) + t1 + kernel_open(K2) + t2
            s += '.section .rodata,"a"\n' + kd(K1, 256) + kd(K2, 256)
            sys.stderr.write(f"nops inserted: {a.nops} {b.nops}\n")
            return s


if __name__ == "__main__":
    import argparse
    ap = argparse.ArgumentParser()
    ap.add_argument("-o", default="k2.s")
    ap.add_argument("--fused", action="store_true")
    ap.add_argument("--stamps", action="store_true")
    x = ap.parse_args()
    open(x.o, "w").write(Gen(fused=x.fused, stamps=x.stamps).build())
```

```python
import sys, struct
from asm2 import *

STG = 46080
WOFF = 18432
GOFF = 138240
EX = 147456
EXQ = EX
EXV = EX + 5120
EXD = EX + 10240
LDS_BYTES = 163840
OBR = 128 * 18432
GATE_WS = 2 * OBR
STAMP_WS = 8 << 20
NEG = 0xf149f2ca
SCALE = struct.unpack("<I", struct.pack("<f", 18 ** -0.5))[0]
LOG2E = 0x3fb8aa3b

sW, sH, sP, sRT, sHGB, sBR, sHG, sIDX, sXCD = 3, 4, 5, 6, 7, 8, 9, 10, 11
sJ, sST, sSLW, sE = 12, 13, 14, 15
KA = 16
pAX, pAW, pAO, pBX, pBW, pBO, pGW, pOUT, pDBG, pWS = [KA + 2 * i for i in range(10)]
SX, SW, S5, SWS = 40, 44, 48, 52
sOX, sOW, sO5, sL5, sRS, sRST, sDW, sDG, sT0, sT1, sT2, sHGO = 56, 57, 58, 59, 60, 61, 62, 63, 64, 65, 66, 67
sM0 = 68
sSTAMP = 80
SWO, SOUT = 96, 40
SWO2 = 36
sGRP2, sCT2, sWL, sWT = 78, 79, 100, 101


class Gen:
    def __init__(self, fused=False, stamps=False, abl=""):
        self.abl = abl
        self.lst = stamps and 'L' in abl
        self.fused = fused
        self.stamps = stamps
        self.nst = 0
        self.stampw = 0
        self.pend = []
        self.nnw = 0

    def stamp(self, a, wait=True):
        if self.stamps:
            a(f"s_memrealtime {sr(sSTAMP, 2)}")
            if wait:
                a(f"s_memtime {sr(sSTAMP + 8, 2)}")
                a("s_waitcnt lgkmcnt(0)")
                a(f"v_writelane_b32 v31, s{sSTAMP}, {self.nst}")
                a(f"v_writelane_b32 v31, s{sSTAMP + 8}, {self.nst + 8}")
                self.nst += 1
                for lane, sp in self.pend:
                    a(f"v_writelane_b32 v31, s{sp}, {lane}")
                self.pend = []

    def stamp_nw(self, a):
        if self.stamps:
            sp = sSTAMP + 10 + 2 * len(self.pend)
            assert len(self.pend) < 3
            a(f"s_memrealtime {sr(sp, 2)}")
            self.pend.append((25 + self.nnw, sp))
            self.nnw += 1

    def stamp_store(self, a, base, tmpv):
        if not self.stamps:
            return
        a(f"s_lshl_b32 s{sT0}, s2, 11\ns_add_u32 s{sT0}, s{sT0}, {base}")
        a(f"v_lshlrev_b32 v{tmpv}, 2, v0\nv_add_u32 v{tmpv}, s{sT0}, v{tmpv}")
        a(f"global_store_dword v{tmpv}, v31, {sr(pWS, 2)}")

    def ids(self, a):
        a(f"""
        s_cmp_ge_u32 s2, 256
        s_cbranch_scc1 .Lend
        s_load_dwordx16 {sr(KA, 16)}, s[0:1], 0
        s_load_dwordx4 {sr(KA + 16, 4)}, s[0:1], 64
        """)
        self.stamp(a)
        a(f"""
        v_lshrrev_b32 v2, 6, v0
        v_and_b32 v1, 63, v0
        v_readfirstlane_b32 s{sW}, v2
        s_and_b32 s{sXCD}, s2, 7
        s_lshr_b32 s{sIDX}, s2, 3
        """)

    def phase1(self, a):
        st = self
        vD = [10, 11, 12, 13, 14, 15]
        vXA, vXL, vXH = [16, 17], [18, 19], [20, 21]
        vWA, vWQ = 22, 23
        vWV = [24, 25, 26, 27]
        vDl, vIsG = 28, 29
        FA, FB = 32, 76
        fr = lambda base: dict(X=[base + 4 * t for t in range(4)], XL=base + 16, XH=base + 20, WQ=base + 24,
                               WK=base + 28, WV=base + 32, WQL=base + 36, WVL=base + 40)
        A_, B_ = fr(FA), fr(FB)
        aQ = [120 + 4 * t for t in range(4)]
        aK = [136 + 4 * t for t in range(4)]
        aV = [152 + 4 * t for t in range(4)]
        aKH, aVH, aQL, aVL, aE = 168, 172, 176, 180, 184
        cOwn, cPrev, cPrev0 = 188, 192, 196
        mO, mP, mQ = 200, 202, 204
        vEW, vEWE, vEQ = 206, 207, 208
        vEV = [209, 210, 211, 212]
        vSO, vSL, vSG = 213, 214, 215
        m27, s27 = magic(27, 2047)

        a(f"""
        s_and_b32 s{sT0}, s{sXCD}, 1
        s_lshl_b32 s{sT0}, s{sT0}, 3
        s_and_b32 s{sT1}, s{sIDX}, 7
        s_add_u32 s{sRT}, s{sT0}, s{sT1}
        s_lshr_b32 s{sT0}, s{sXCD}, 1
        s_lshl_b32 s{sT0}, s{sT0}, 2
        s_lshr_b32 s{sT2}, s{sIDX}, 3
        s_add_u32 s{sHGB}, s{sT0}, s{sT2}
        s_lshl_b32 s{sT2}, s{sT2}, 1
        s_add_u32 s{sST}, s{sT1}, s{sT2}
        s_sub_u32 s{sT0}, s{sST}, 9
        s_cmp_ge_u32 s{sST}, 9
        s_cselect_b32 s{sST}, s{sT0}, s{sST}
        s_mov_b32 s{sRST}, s{sST}
        s_lshr_b32 s{sBR}, s{sHGB}, 3
        s_and_b32 s{sHG}, s{sHGB}, 7
        s_mul_i32 s{sHGO}, s{sHG}, 144
        s_and_b32 s{sH}, s{sW}, 3
        s_lshr_b32 s{sP}, s{sW}, 2
        v_lshrrev_b32 v3, 3, v1
        v_and_b32 v4, 7, v1
        v_xor_b32 v4, v4, v3
        v_mul_u32_u24 v5, 2304, v3
        v_lshl_add_u32 v5, v4, 4, v5
        s_lshl_b32 s{sT0}, s{sRT}, 7
        s_lshl_b32 s{sT1}, s{sW}, 4
        s_add_u32 s{sT1}, s{sT1}, s{sT0}
        s_mul_i32 s{sT1}, s{sT1}, 1152
        v_add_u32 v{vD[0]}, s{sT1}, v5
        v_add_u32 v{vD[1]}, 1152, v{vD[0]}
        s_lshl_b32 s{sSLW}, s{sW}, 10
        s_waitcnt lgkmcnt(0)
        s_mov_b32 s{SX}, s{pAX}
        s_and_b32 s{SX + 1}, s{pAX + 1}, 0xffff
        s_mov_b32 s{SX + 2}, {2048 * 1152}
        s_mov_b32 s{SX + 3}, 0x20000
        s_cmp_eq_u32 s{sBR}, 1
        s_cselect_b32 s{SW}, s{pBW}, s{pAW}
        s_cselect_b32 s{SW + 1}, s{pBW + 1}, s{pAW + 1}
        s_and_b32 s{SW + 1}, s{SW + 1}, 0xffff
        s_mov_b32 s{SW + 2}, {576 * 3456}
        s_mov_b32 s{SW + 3}, 0x20000
        """)
        Lg = a.label("nogate")
        a(f"""
        s_lshl_b32 s{sT0}, s{sHGB}, 3
        s_add_u32 s{sT0}, s{sT0}, s{sW}
        s_cmp_lt_u32 s{sT0}, 5
        s_cbranch_scc0 {Lg}
        """)
        a.skip_begin()
        a(f"""
        v_min_u32 v6, 287, v0
        v_lshlrev_b32 v6, 2, v6
        global_load_dword v30, v6, {sr(pGW, 2)}
        """)
        a.skip_end()
        a(f"{Lg}:")

        def waddr(n, out):
            a(f"""
            v_mul_u32_u24 v6, {m27}, v{n}
            v_lshrrev_b32 v6, {s27}, v6
            v_mul_u32_u24 v7, 27, v6
            v_sub_u32 v7, v{n}, v7
            v_mul_u32_u24 v8, 57, v7
            v_lshrrev_b32 v8, 9, v8
            v_bfe_u32 v9, v6, 1, 2
            v_and_or_b32 v9, v6, 56, v9
            v_and_b32 v6, 1, v6
            v_lshl_or_b32 v9, v6, 2, v9
            v_mul_u32_u24 v9, 3456, v9
            v_lshl_add_u32 v9, v7, 4, v9
            v_mul_u32_u24 v8, 1008, v8
            v_add_u32 v{out}, v9, v8
            """)

        def soffs():
            a(f"""
            s_lshl_b32 s{sOX}, s{sST}, 7
            s_mul_i32 s{sOW}, s{sST}, {64 * 3456}
            s_add_u32 s{sOW}, s{sOW}, s{sHGO}
            s_cmp_lt_u32 s{sW}, 2
            s_cselect_b32 s{sO5}, s{sOX}, s{sOW}
            """)

        def dma(j):
            if j < 2:
                return [f"s_add_u32 m0, s{sSLW}, {8192 * j}",
                        f"buffer_load_dwordx4 v{vD[j]}, {sr(SX, 4)}, s{sOX} offen lds"]
            if j < 5:
                return [f"s_add_u32 m0, s{sSLW}, {WOFF + 8192 * (j - 2)}",
                        f"buffer_load_dwordx4 v{vD[j]}, {sr(SW, 4)}, s{sOW} offen lds"]
            raise ValueError

        def dma5():
            L = a.label("no5")
            a(f"s_cmp_lt_u32 s{sW}, 5\ns_cbranch_scc0 {L}")
            a.skip_begin()
            a(f"s_add_u32 m0, s{sSLW}, s{sL5}")
            a(f"buffer_load_dwordx4 v{vD[5]}, {sr(S5, 4)}, s{sO5} offen lds")
            a.skip_end()
            a(f"{L}:")

        def adv_dma():
            a(f"""
            s_add_u32 s{sST}, s{sST}, 1
            s_cmp_eq_u32 s{sST}, 9
            s_cselect_b32 s{sST}, 0, s{sST}
            s_add_u32 s{sSLW}, s{sSLW}, {STG}
            s_sub_u32 s{sT0}, s{sSLW}, {3 * STG}
            s_cmp_ge_u32 s{sSLW}, {3 * STG}
            s_cselect_b32 s{sSLW}, s{sT0}, s{sSLW}
            """)

        soffs()
        st.stamp_nw(a)
        for j in range(2):
            a("\n".join(dma(j)))
        waddr(0, vD[2])
        a("\n".join(dma(2)))
        a(f"v_add_u32 v2, 512, v0")
        waddr(2, vD[3])
        a("\n".join(dma(3)))
        a(f"v_add_u32 v2, 1024, v0")
        waddr(2, vD[4])
        a("\n".join(dma(4)))
        a(f"v_add_u32 v2, 1408, v0")
        waddr(2, vD[5])
        a(f"""
        s_lshl_b32 s{sT0}, s{sRT}, 7
        s_sub_u32 s{sT0}, s{sT0}, 16
        s_max_i32 s{sT0}, s{sT0}, 0
        s_add_u32 s{sT0}, s{sT0}, s{sW}
        s_mul_i32 s{sT0}, s{sT0}, 1152
        v_add_u32 v5, s{sT0}, v5
        s_cmp_lt_u32 s{sW}, 2
        s_cselect_b64 vcc, -1, 0
        s_cselect_b32 s{S5}, s{SX}, s{SW}
        s_cselect_b32 s{S5 + 1}, s{SX + 1}, s{SW + 1}
        s_cselect_b32 s{S5 + 2}, s{SX + 2}, s{SW + 2}
        s_mov_b32 s{S5 + 3}, 0x20000
        s_mov_b32 s{sL5}, {40 * 1024}
        s_cselect_b32 s{sL5}, {16 * 1024}, s{sL5}
        v_cndmask_b32 v{vD[5]}, v{vD[5]}, v5, vcc
        """)
        dma5()
        st.stamp_nw(a)
        adv_dma()
        soffs()
        for j in range(5):
            a("\n".join(dma(j)))
        dma5()
        st.stamp_nw(a)
        adv_dma()

        a(f"""
        v_lshrrev_b32 v2, 4, v1
        v_and_b32 v3, 15, v1
        v_bfe_u32 v4, v1, 2, 2
        v_and_b32 v5, 3, v1
        v_and_b32 v6, 7, v3
        v_xor_b32 v7, v2, v6
        v_lshlrev_b32 v7, 4, v7
        v_lshl_add_u32 v8, v3, 7, v7
        s_lshl_b32 s{sT0}, s{sP}, 13
        v_add_u32 v{vXA[0]}, s{sT0}, v8
        v_xor_b32 v{vXA[1]}, 64, v{vXA[0]}
        s_lshl_b32 s{sT0}, s{sW}, 11
        v_add_u32 v{vXL[0]}, s{sT0}, v8
        v_xor_b32 v{vXL[1]}, 64, v{vXL[0]}
        v_lshl_add_u32 v8, v6, 7, v7
        s_lshl_b32 s{sT0}, s{sP}, 10
        s_add_u32 s{sT0}, s{sT0}, 16384
        v_add_u32 v{vXH[0]}, s{sT0}, v8
        v_xor_b32 v{vXH[1]}, 64, v{vXH[0]}
        ; W rows: (8g+2r)*432
        v_lshlrev_b32 v6, 2, v2
        v_add_u32 v6, v6, v4
        v_mul_u32_u24 v6, 864, v6
        ; hoff(h) = 36h + (h&1)*4
        s_mul_i32 s{sT0}, s{sH}, 36
        s_and_b32 s{sT1}, s{sH}, 1
        s_lshl_b32 s{sT1}, s{sT1}, 2
        s_add_u32 s{sT0}, s{sT0}, s{sT1}
        s_add_u32 s{sT0}, s{sT0}, {WOFF}
        v_lshl_add_u32 v7, v5, 3, v6
        v_add_u32 v{vWA}, s{sT0}, v7
        v_mul_u32_u24 v7, 72, v5
        v_add3_u32 v{vWQ}, v6, v7, 32
        v_add_u32 v{vWQ}, {WOFF}, v{vWQ}
        v_lshl_add_u32 v7, v2, 3, v4
        v_lshlrev_b32 v7, 3, v7
        s_lshl_b32 s{sT0}, s{sRST}, 9
        s_add_u32 s{sT0}, s{sT0}, {GOFF}
        v_add_u32 v7, s{sT0}, v7
        v_lshrrev_b32 v{vIsG}, 1, v5
        v_cmp_eq_u32 vcc, 1, v{vIsG}
        """)
        for kk in range(2):
            for jj in range(2):
                a(f"""
                v_add_u32 v8, {288 + (32 * kk + jj) * 432}, v{vWQ}
                v_add_u32 v9, {(32 * kk + 4 * jj) * 8}, v7
                v_cndmask_b32 v{vWV[2 * kk + jj]}, v8, v9, vcc
                """)
        a(f"""
        s_lshl_b32 s{sT0}, s{sP}, 1
        s_sub_u32 s{sE}, s{sH}, s{sT0}
        s_mov_b32 s{sJ}, 0
        s_mov_b32 s{sRS}, 0
        """)
        for r in list(range(FB, FB + 44)) + list(range(120, 188)):
            a(f"v_mov_b32 v{r}, 0")

        a(f"""
        v_lshlrev_b32 v6, 2, v2
        v_sub_u32 v6, v3, v6
        v_mov_b32 v9, {NEG}
        """)
        for r in range(4):
            a(f"""
            v_subrev_u32 v7, {r}, v6
            v_cmp_gt_u32 vcc, 8, v7
            v_cmp_gt_i32 {sr(sM0, 2)}, -8, v7
            v_cmp_le_i32 {sr(sM0 + 2, 2)}, 0, v7
            v_cndmask_b32 v{cOwn + r}, v9, 0, vcc
            v_cndmask_b32 v{cPrev + r}, v9, 0, {sr(sM0, 2)}
            v_cndmask_b32 v{216 + r}, 0, -1, {sr(sM0 + 2, 2)}
            """)
        a(f"""
        v_and_b32 v216, 0xffff, v216
        v_and_b32 v217, 0xffff0000, v217
        v_and_b32 v218, 0xffff, v218
        v_and_b32 v219, 0xffff0000, v219
        v_or_b32 v{mO}, v216, v217
        v_or_b32 v{mO + 1}, v218, v219
        v_not_b32 v{mP}, v{mO}
        v_not_b32 v{mP + 1}, v{mO + 1}
        s_cmp_eq_u32 s{sRT}, 0
        s_cselect_b64 vcc, -1, 0
        """)
        for r in range(4):
            a(f"v_cndmask_b32 v{cPrev0 + r}, v{cPrev + r}, v9, vcc")
        a(f"""
        s_and_b32 s{sT0}, s{sH}, 1
        s_cmp_eq_u32 s{sT0}, 0
        s_cselect_b32 s{sM0}, 0xffff, 0
        s_cselect_b32 s{sM0 + 2}, 0, 0xffff
        s_mov_b32 s{sM0 + 1}, 0
        s_mov_b32 s{sM0 + 3}, 0
        v_cndmask_b32 v{mQ}, 0, -1, {sr(sM0, 2)}
        v_cndmask_b32 v{mQ + 1}, 0, -1, {sr(sM0 + 2, 2)}
        s_mul_i32 s{sT0}, s{sP}, 2560
        s_lshl_b32 s{sT1}, s{sH}, 9
        s_add_u32 s{sT1}, s{sT1}, s{sT0}
        s_add_u32 s{sT1}, s{sT1}, {EXQ + 512}
        v_lshlrev_b32 v6, 3, v1
        v_add_u32 v{vEW}, s{sT1}, v6
        s_add_u32 s{sT1}, s{sT0}, {EXQ}
        s_add_u32 s{sT2}, s{sT0}, {EXV}
        s_cmp_eq_u32 s{sE}, 1
        s_cselect_b32 s{sT1}, s{sT2}, s{sT1}
        s_cmp_lt_u32 s{sE}, 2
        s_cselect_b32 s{sT1}, s{sT1}, {EXD}
        v_add_u32 v{vEWE}, s{sT1}, v6
        s_lshr_b32 s{sT1}, s{sH}, 1
        s_lshl_b32 s{sT1}, s{sT1}, 7
        s_add_u32 s{sT1}, s{sT1}, s{sT0}
        s_add_u32 s{sT1}, s{sT1}, {EXQ}
        v_lshlrev_b32 v6, 3, v3
        v_add_u32 v{vEQ}, s{sT1}, v6
        s_lshl_b32 s{sT1}, s{sH}, 4
        v_xor_b32 v6, s{sT1}, v6
        v_lshl_add_u32 v6, v2, 7, v6
        """)
        for t in range(4):
            a(f"v_xor_b32 v7, {32 * t}, v6\nv_add_u32 v{vEV[t]}, s{sT2}, v7")
        a(f"""
        s_mov_b32 s{SWS}, s{pWS}
        s_and_b32 s{SWS + 1}, s{pWS + 1}, 0xffff
        s_mov_b32 s{SWS + 2}, {GATE_WS + 8192}
        s_mov_b32 s{SWS + 3}, 0x20000
        s_lshl_b32 s{sT0}, s{sRT}, 3
        s_lshl_b32 s{sT1}, s{sP}, 2
        s_add_u32 s{sT0}, s{sT0}, s{sT1}
        s_mul_i32 s{sT0}, s{sT0}, 18432
        s_mul_i32 s{sT1}, s{sBR}, {OBR}
        s_add_u32 s{sT0}, s{sT0}, s{sT1}
        s_lshl_b32 s{sT1}, s{sHG}, 11
        s_lshl_b32 s{sT2}, s{sH}, 9
        s_add_u32 s{sT1}, s{sT1}, s{sT2}
        s_add_u32 s{sT1}, s{sT1}, s{sT0}
        v_and_b32 v6, 1, v2
        v_mul_u32_u24 v6, 18432, v6
        v_lshrrev_b32 v7, 1, v2
        v_lshl_add_u32 v6, v7, 8, v6
        v_lshl_add_u32 v6, v3, 4, v6
        v_add_u32 v{vSO}, s{sT1}, v6
        s_lshl_b32 s{sT1}, s{sHG}, 8
        s_lshl_b32 s{sT2}, s{sH}, 2
        s_add_u32 s{sT1}, s{sT1}, s{sT2}
        s_add_u32 s{sT1}, s{sT1}, s{sT0}
        s_add_u32 s{sT1}, s{sT1}, 16384
        v_mul_u32_u24 v6, 18432, v2
        v_lshl_add_u32 v6, v3, 4, v6
        v_add_u32 v{vSL}, s{sT1}, v6
        s_lshl_b32 s{sT1}, s{sRT}, 3
        s_add_u32 s{sT1}, s{sT1}, s{sW}
        s_lshl_b32 s{sT1}, s{sT1}, 6
        s_add_u32 s{sT1}, s{sT1}, {GATE_WS}
        v_lshlrev_b32 v6, 4, v2
        v_add_u32 v{vSG}, s{sT1}, v6
        """)
        if st.fused:
            st.wo_setup(a)
        Lg2 = a.label("nogate2")
        a(f"""
        s_lshl_b32 s{sT0}, s{sHGB}, 3
        s_add_u32 s{sT0}, s{sT0}, s{sW}
        s_cmp_lt_u32 s{sT0}, 5
        s_cbranch_scc0 {Lg2}
        """)
        a.skip_begin()
        a(f"""
        v_min_u32 v6, 287, v0
        v_lshlrev_b32 v6, 4, v6
        v_mov_b32 v217, 0
        v_mov_b32 v219, 0
        s_waitcnt vmcnt(12)
        v_and_b32 v216, 0xffff, v30
        v_lshrrev_b32 v218, 16, v30
        ds_write_b128 v6, v[216:219] offset:{GOFF - 2 * STG}
        """.replace("v_lshlrev_b32 v6, 4, v6", f"v_lshlrev_b32 v6, 4, v6\nv_add_u32 v6, {2 * STG}, v6"))
        a.skip_end()
        a(f"{Lg2}:")
        st.stamp(a)

        def reads(F, kk):
            o = lambda sec, jj: (32 * kk + jj) * 432 + sec * 144
            L = []
            tr = lambda dst, adr, off: f"ds_read_b64_tr_b16 {vr(dst, 2)}, v{adr} offset:{off}"
            L += [tr(F['WQ'] + 2 * jj, vWA, o(0, jj)) for jj in range(2)]
            L += [f"ds_read_b128 {vr(F['X'][t], 4)}, v{vXA[kk]} offset:{2048 * t}" for t in range(4)]
            L += [tr(F['WK'] + 2 * jj, vWA, o(1, jj)) for jj in range(2)]
            L += [f"ds_read_b128 {vr(F['XH'], 4)}, v{vXH[kk]}"]
            L += [tr(F['WV'] + 2 * jj, vWA, o(2, jj)) for jj in range(2)]
            L += [f"ds_read_b128 {vr(F['XL'], 4)}, v{vXL[kk]}"]
            L += [tr(F['WQL'] + 2 * jj, vWQ, o(0, jj)) for jj in range(2)]
            L += [tr(F['WVL'] + 2 * jj, vWV[2 * kk + jj], 0) for jj in range(2)]
            if 'r' in st.abl:
                L = ["s_nop 0"] * len(L)
            if 'x' in st.abl:
                L = [l if 'b128' in l else "s_nop 0" for l in L]
            if 'w' in st.abl:
                L = [l if 'b128' not in l else "s_nop 0" for l in L]
            return L

        mf = lambda d, x, y: f"v_mfma_f32_16x16x32_bf16 {vr(d, 4)}, {vr(x, 4)}, {vr(y, 4)}, {vr(d, 4)}"

        def mfmas(F):
            L = [mf(aQ[t], F['WQ'], F['X'][t]) for t in range(4)]
            L += [mf(aK[t], F['WK'], F['X'][t]) for t in range(4)]
            L += [mf(aKH, F['WK'], F['XH'])]
            L += [mf(aV[t], F['X'][t], F['WV']) for t in range(4)]
            L += [mf(aVH, F['XH'], F['WV'])]
            L += [mf(aQL, F['WQL'], F['XL']), mf(aVL, F['XL'], F['WVL'])]
            if 'm' in st.abl:
                L = ["s_nop 0"] * len(L)
            return L

        def extra(F):
            L1, L2 = a.label("e"), a.label("e")
            a(f"s_cmp_eq_u32 s{sE}, 0\ns_cbranch_scc0 {L1}")
            a.skip_begin()
            a(mf(aE, F['WQL'], F['XH']))
            a.skip_end()
            a(f"{L1}:\ns_cmp_eq_u32 s{sE}, 1\ns_cbranch_scc0 {L2}")
            a.skip_begin()
            a(mf(aE, F['XH'], F['WVL']))
            a.skip_end()
            a(f"{L2}:")

        Lw5, Lw0, Lwd = a.label("w5"), a.label("w0"), a.label("wd")
        Lnd, Lnd2 = a.label("nodma"), a.label("nodma")
        a(".Lloop:")
        if st.lst:
            a(f"s_memrealtime {sr(sSTAMP + 2, 2)}")
        a(f"""
        s_cmp_eq_u32 s{sJ}, 8
        s_cbranch_scc1 {Lw0}
        s_cmp_lt_u32 s{sW}, 5
        s_cbranch_scc0 {Lw5}
        s_waitcnt vmcnt(6)
        s_branch {Lwd}
        {Lw5}:
        s_waitcnt vmcnt(5)
        s_branch {Lwd}
        {Lw0}:
        s_waitcnt vmcnt({5 if st.fused else 0})
        {Lwd}:
        {"s_memrealtime " + sr(sSTAMP + 4, 2) if st.lst else ""}
        s_waitcnt lgkmcnt(0)
        s_barrier
        """)
        if st.lst: st.stamp(a, wait=False)
        M = mfmas(B_)
        R = reads(A_, 0)
        for n in range(8):
            a(M[n])
            a(R[2 * n])
            a(R[2 * n + 1])
        a(f"s_cmp_lt_u32 s{sJ}, {0 if 'd' in st.abl else 7}\ns_cbranch_scc0 {Lnd}")
        a.skip_begin()
        soffs()
        for n in range(8, 13):
            a(M[n])
            a("\n".join(dma(n - 8)))
        a.skip_end()
        dma5_inline = True
        L5 = a.label("no5")
        a.skip_begin()
        a(f"s_cmp_lt_u32 s{sW}, 5\ns_cbranch_scc0 {L5}")
        a(f"s_add_u32 m0, s{sSLW}, s{sL5}")
        a(f"buffer_load_dwordx4 v{vD[5]}, {sr(S5, 4)}, s{sO5} offen lds")
        a(f"{L5}:")
        adv_dma()
        a(f"s_branch {Lnd2}")
        a.skip_end()
        a(f"{Lnd}:")
        if st.fused:
            Lj8 = a.label("j8")
            a(f"s_cmp_eq_u32 s{sJ}, 7\ns_cbranch_scc0 {Lj8}")
            a.skip_begin()
            for n in range(8, 13):
                a(M[n])
                st.wo_piece(a, n - 8)
            a(f"s_branch {Lnd2}")
            a.skip_end()
            a(f"{Lj8}:")
            a.skip_begin()
            for n in range(8, 13):
                a(M[n])
                st.wo_piece(a, n - 3)
            st.wo_piece(a, 10)
            a.skip_end()
        else:
            a.skip_begin()
            for n in range(8, 13):
                a(M[n])
            a.skip_end()
        a(f"{Lnd2}:")
        for n in range(13, 16):
            a(M[n])
        extra(B_)
        if st.lst:
            a(f"s_memrealtime {sr(sSTAMP + 6, 2)}")
        a("s_waitcnt lgkmcnt(0)")
        if st.lst:
            a(f"s_add_u32 m0, s{sJ}, 32\ns_nop 0\nv_writelane_b32 v31, s{sSTAMP + 2}, m0")
            a(f"s_add_u32 m0, s{sJ}, 41\ns_nop 0\nv_writelane_b32 v31, s{sSTAMP + 4}, m0")
            a(f"s_add_u32 m0, s{sJ}, 50\ns_nop 0\nv_writelane_b32 v31, s{sSTAMP + 6}, m0")
            a(f"s_add_u32 m0, s{sJ}, 16\ns_nop 0\nv_writelane_b32 v31, s{sSTAMP}, m0")
        M = mfmas(A_)
        R = reads(B_, 1)
        for n in range(8):
            a(M[n])
            a(R[2 * n])
            a(R[2 * n + 1])
        upd = f"""
        s_mov_b32 s{sDW}, {STG}
        s_cmp_eq_u32 s{sRS}, 2
        s_cselect_b32 s{sDW}, {(-2 * STG) & 0xffffffff}, s{sDW}
        s_cselect_b32 s{sRS}, -1, s{sRS}
        s_add_u32 s{sRS}, s{sRS}, 1
        s_movk_i32 s{sDG}, 512
        s_cmp_eq_u32 s{sRST}, 8
        s_cselect_b32 s{sDG}, {(-4096) & 0xffffffff}, s{sDG}
        s_cselect_b32 s{sRST}, -1, s{sRST}
        s_add_u32 s{sRST}, s{sRST}, 1
        s_sub_u32 s{sDG}, s{sDG}, s{sDW}
        v_mul_i32_i24 v{vDl}, s{sDG}, v{vIsG}
        v_add_u32 v{vDl}, s{sDW}, v{vDl}
        """.strip().split("\n")
        upd += [f"v_add_u32 v{r}, s{sDW}, v{r}" for r in vXA + vXL + vXH + [vWA, vWQ]]
        upd += [f"v_add_u32 v{r}, v{vDl}, v{r}" for r in vWV]
        per = (len(upd) + 7) // 8
        for n in range(8, 16):
            a(M[n])
            for u in upd[(n - 8) * per:(n - 7) * per]:
                a(u)
        extra(A_)
        a(f"""
        s_add_u32 s{sJ}, s{sJ}, 1
        s_cmp_lt_u32 s{sJ}, 9
        s_cbranch_scc1 .Lloop
        s_waitcnt lgkmcnt(0)
        """)
        st.stamp(a)
        M = mfmas(B_)
        a(M[14])
        a(M[15])
        extra(B_)
        for n in range(0, 6):
            a(M[n])
        pk = lambda d, x: f"v_cvt_pk_bf16_f32 v{d}, v{x}, v{x + 1}"
        T = 32
        a(f"""
        {pk(T, aQL)}
        {pk(T + 1, aQL + 2)}
        {pk(T + 2, aVL)}
        {pk(T + 3, aVL + 2)}
        {pk(T + 4, aE)}
        {pk(T + 5, aE + 2)}
        """)
        a(M[6])
        a(f"ds_write_b64 v{vEW}, {vr(T, 2)}")
        a(M[7])
        a(f"ds_write_b64 v{vEW}, {vr(T + 2, 2)} offset:{EXV - EXQ}")
        a(M[8])
        a(f"ds_write_b64 v{vEWE}, {vr(T + 4, 2)}")
        for n in range(9, 14):
            a(M[n])
        Lg3 = a.label("nogate3")
        sc = " sc1" if st.fused else ""
        a(f"s_cmp_eq_u32 s{sHGB}, 0\ns_cbranch_scc0 {Lg3}")
        a.skip_begin()
        a(f"""
        s_mov_b32 s{sM0}, 0x01000100
        s_mov_b32 s{sM0 + 1}, 0x01000100
        s_mov_b64 exec, {sr(sM0, 2)}
        buffer_store_dwordx4 {vr(aVL, 4)}, v{vSG}, {sr(SWS, 4)}, 0 offen{sc}
        s_mov_b64 exec, -1
        """)
        a.skip_end()
        a(f"{Lg3}:")
        Qf = [40 + 4 * t for t in range(4)]
        Kf = {t: 56 + 4 * (t + 1) for t in range(-1, 4)}
        Vp = {t: 216 + 2 * (3 - t) for t in range(-1, 4)}
        VLf = [226 + 4 * t for t in range(4)]
        for t in range(4):
            a(pk(Qf[t], aQ[t]))
            a(pk(Qf[t] + 1, aQ[t] + 2))
        a("s_waitcnt lgkmcnt(0)\ns_barrier")
        for t in range(4):
            a(f"ds_read_b64 {vr(Qf[t] + 2, 2)}, v{vEQ} offset:{(t + 1) * 512}")
        for t in range(-1, 4):
            a(f"ds_read_b64 {vr(Kf[t] + 2, 2)}, v{vEQ} offset:{(t + 1) * 512 + 256}")
        if st.fused:
            for i in range(11, 18):
                st.wo_piece(a, i)
        for t in range(4):
            a(pk(Kf[t], aK[t]))
            a(pk(Kf[t] + 1, aK[t] + 2))
        a(pk(Kf[-1], aKH))
        a(pk(Kf[-1] + 1, aKH + 2))
        a("s_waitcnt lgkmcnt(5)")
        for t in range(4):
            a(f"v_and_b32 v{Qf[t] + 2}, v{mQ}, v{Qf[t] + 2}")
            a(f"v_and_b32 v{Qf[t] + 3}, v{mQ + 1}, v{Qf[t] + 3}")
        a("s_waitcnt lgkmcnt(0)")
        for t in range(4):
            a(f"ds_read_b64 {vr(VLf[t], 2)}, v{vEV[t]} offset:{(t + 1) * 512}")
            a(f"ds_read_b64 {vr(VLf[t] + 2, 2)}, v{vEV[t]} offset:{t * 512}")
        So = [76 + 4 * t for t in range(4)]
        Sp = [92 + 4 * t for t in range(4)]
        mfc = lambda d, x, y, c: f"v_mfma_f32_16x16x32_bf16 {vr(d, 4)}, {vr(x, 4)}, {vr(y, 4)}, {c}"
        for t in range(4):
            a(mfc(So[t], Kf[t], Qf[t], vr(cOwn, 4)))
            a(mfc(Sp[t], Kf[t - 1], Qf[t], vr(cPrev0 if t == 0 else cPrev, 4)))
        for t in range(4):
            a(pk(Vp[t], aV[t]))
            a(pk(Vp[t] + 1, aV[t] + 2))
        a(pk(Vp[-1], aVH))
        a(pk(Vp[-1] + 1, aVH + 2))
        a(f"s_mov_b32 s{sT0}, {SCALE}\ns_mov_b32 s{sT1}, {LOG2E}")
        Pk = [120 + 2 * t for t in range(4)]
        Mx = [128 + t for t in range(4)]
        Bc = [132 + t for t in range(4)]
        T4 = range(4)
        for r in range(4):
            for t in T4:
                a(f"v_max_f32 v{So[t] + r}, v{So[t] + r}, v{Sp[t] + r}")

        def rnd():
            for t in T4:
                a(pk(Pk[t], So[t]))
                a(pk(Pk[t] + 1, So[t] + 2))
            for t in T4:
                a(f"v_lshlrev_b32 v{So[t]}, 16, v{Pk[t]}")
                a(f"v_and_b32 v{So[t] + 1}, 0xffff0000, v{Pk[t]}")
                a(f"v_lshlrev_b32 v{So[t] + 2}, 16, v{Pk[t] + 1}")
                a(f"v_and_b32 v{So[t] + 3}, 0xffff0000, v{Pk[t] + 1}")
        rnd()
        for t in T4:
            for r in range(4):
                a(f"v_mul_f32 v{So[t] + r}, s{sT0}, v{So[t] + r}")
        rnd()
        for t in T4:
            a(f"v_max3_f32 v{Mx[t]}, v{So[t]}, v{So[t] + 1}, v{So[t] + 2}")
        for t in T4:
            a(f"v_max_f32 v{Mx[t]}, v{Mx[t]}, v{So[t] + 3}")

        def reduce_bcast(op, mid):
            a(f"""
            v_permlane16_swap_b32 v{Mx[0]}, v{Mx[1]}
            v_permlane16_swap_b32 v{Mx[2]}, v{Mx[3]}
            {op} v{Mx[0]}, v{Mx[0]}, v{Mx[1]}
            {op} v{Mx[2]}, v{Mx[2]}, v{Mx[3]}
            v_permlane32_swap_b32 v{Mx[0]}, v{Mx[2]}
            {op} v{Bc[0]}, v{Mx[0]}, v{Mx[2]}
            """)
            a(mid)
            a(f"""
            v_mov_b32 v{Bc[2]}, v{Bc[0]}
            v_permlane32_swap_b32 v{Bc[0]}, v{Bc[2]}
            v_mov_b32 v{Bc[1]}, v{Bc[0]}
            v_mov_b32 v{Bc[3]}, v{Bc[2]}
            v_permlane16_swap_b32 v{Bc[0]}, v{Bc[1]}
            v_permlane16_swap_b32 v{Bc[2]}, v{Bc[3]}
            """)
        reduce_bcast("v_max_f32", f"v_mul_f32 v{Bc[0]}, s{sT1}, v{Bc[0]}")
        for t in T4:
            for r in range(4):
                a(f"v_fma_f32 v{So[t] + r}, v{So[t] + r}, s{sT1}, -v{Bc[t]}")
        for t in T4:
            for r in range(4):
                a(f"v_exp_f32 v{So[t] + r}, v{So[t] + r}")
        for t in T4:
            a(f"v_add_f32 v{Mx[t]}, v{So[t]}, v{So[t] + 1}")
            a(f"v_add_f32 v{Sp[t]}, v{So[t] + 2}, v{So[t] + 3}")
        for t in T4:
            a(f"v_add_f32 v{Mx[t]}, v{Mx[t]}, v{Sp[t]}")
        reduce_bcast("v_add_f32", f"v_rcp_f32 v{Bc[0]}, v{Bc[0]}")
        for t in T4:
            for r in range(4):
                a(f"v_mul_f32 v{So[t] + r}, v{So[t] + r}, v{Bc[t]}")
        Pf = Sp
        for t in T4:
            a(pk(Pk[t], So[t]))
            a(pk(Pk[t] + 1, So[t] + 2))
        for t in T4:
            a(f"v_and_b32 v{Pf[t]}, v{mO}, v{Pk[t]}")
            a(f"v_and_b32 v{Pf[t] + 1}, v{mO + 1}, v{Pk[t] + 1}")
            a(f"v_and_b32 v{Pf[t] + 2}, v{mP}, v{Pk[t]}")
            a(f"v_and_b32 v{Pf[t] + 3}, v{mP + 1}, v{Pk[t] + 1}")
        a("s_waitcnt lgkmcnt(0)")
        Om = [136 + 4 * t for t in range(4)]
        Ol = [152 + 4 * t for t in range(4)]
        for t in T4:
            a(mfc(Om[t], Vp[t], Pf[t], "0"))
        for t in T4:
            a(mfc(Ol[t], VLf[t], Pf[t], "0"))
        Op = 168
        for t in T4:
            a(pk(Op + 2 * t, Om[t]))
            a(pk(Op + 2 * t + 1, Om[t] + 2))
        for q in range(2):
            a(f"v_permlane16_swap_b32 v{Op + 4 * q}, v{Op + 4 * q + 2}")
            a(f"v_permlane16_swap_b32 v{Op + 4 * q + 1}, v{Op + 4 * q + 3}")
        a(f"s_mov_b32 s{sT0}, {2 * 18432}")
        a(f"buffer_store_dwordx4 {vr(Op, 4)}, v{vSO}, {sr(SWS, 4)}, 0 offen{sc}")
        a(f"buffer_store_dwordx4 {vr(Op + 4, 4)}, v{vSO}, {sr(SWS, 4)}, s{sT0} offen{sc}")
        a(f"""
        s_mov_b32 s{sM0}, 0xffff0000
        s_mov_b32 s{sM0 + 1}, 0
        s_mov_b32 s{sM0 + 2}, 0
        s_mov_b32 s{sM0 + 3}, 0xffff
        s_mov_b32 s{sM0 + 4}, 0
        s_mov_b32 s{sM0 + 5}, 0xffff0000
        """)
        for t in T4:
            a(pk(176 + t, Ol[t]))
        for t in range(1, 4):
            a(f"v_cndmask_b32 v176, v176, v{176 + t}, {sr(sM0 + 2 * (t - 1), 2)}")
        a(f"buffer_store_dword v176, v{vSL}, {sr(SWS, 4)}, 0 offen{sc}")
        st.stamp(a)

    def phase2_setup(self, a):
        a(f"""
        s_mul_i32 s{sT0}, s{sXCD}, 29
        s_min_u32 s{sT1}, s{sXCD}, 2
        s_add_u32 s{sT0}, s{sT0}, s{sT1}
        s_add_u32 s{sT0}, s{sT0}, s{sIDX}
        s_cmp_lt_u32 s{sXCD}, 2
        s_cselect_b32 s{sT1}, 30, 29
        s_cmp_lt_u32 s{sIDX}, s{sT1}
        s_cbranch_scc0 .Lend
        s_mul_i32 s6, s{sT0}, 57
        s_lshr_b32 s6, s6, 9
        s_mul_i32 s{sT1}, s6, 9
        s_sub_u32 s7, s{sT0}, s{sT1}
        s_and_b32 s4, s{sW}, 3
        s_lshr_b32 s5, s{sW}, 2
        """)

    def phase2(self, a):
        st = self
        sKQ, sNH, sGRP, sCT = 4, 5, 6, 7
        assert all((t * 57) >> 9 == t // 9 for t in range(234))
        sc = " sc1" if st.fused else ""
        a(f"""
        s_waitcnt lgkmcnt(0)
        s_cmp_eq_u32 s{sNH}, 1
        s_cselect_b32 s{SWO}, s{pBO}, s{pAO}
        s_cselect_b32 s{SWO + 1}, s{pBO + 1}, s{pAO + 1}
        s_and_b32 s{SWO + 1}, s{SWO + 1}, 0xffff
        s_mov_b32 s{SWO + 2}, {576 * 1152}
        s_mov_b32 s{SWO + 3}, 0x20000
        v_lshrrev_b32 v2, 3, v1
        v_and_b32 v3, 7, v1
        ; sw = ((j>>1)&1) | ((g'&1)<<1)
        v_bfe_u32 v4, v2, 1, 1
        s_and_b32 s{sT0}, s{sKQ}, 1
        s_lshl_b32 s{sT1}, s{sT0}, 1
        v_or_b32 v4, s{sT1}, v4
        v_lshrrev_b32 v5, 1, v3
        v_xor_b32 v5, v5, v4
        v_and_b32 v6, 1, v3
        v_lshlrev_b32 v6, 4, v6
        v_lshl_add_u32 v6, v5, 5, v6
        s_lshl_b32 s{sT1}, s{sCT}, 7
        v_add_u32 v6, s{sT1}, v6
        s_lshr_b32 s{sT1}, s{sKQ}, 1
        s_mul_i32 s{sT1}, s{sT1}, 20
        s_lshl_b32 s{sT0}, s{sT0}, 3
        s_add_u32 s{sT1}, s{sT1}, s{sT0}
        v_add_u32 v7, s{sT1}, v2
        v_mul_u32_u24 v7, 1152, v7
        v_add_u32 v10, v7, v6
        v_lshrrev_b32 v7, 1, v2
        v_mul_u32_u24 v8, 18, v7
        v_and_b32 v7, 1, v7
        v_xor_b32 v7, 1, v7
        v_lshl_add_u32 v8, v7, 4, v8
        v_and_b32 v7, 1, v2
        v_add_u32 v8, v8, v7
        s_mul_i32 s{sT1}, s{sKQ}, 72
        v_add_u32 v8, s{sT1}, v8
        v_mul_u32_u24 v8, 1152, v8
        v_add_u32 v11, v8, v6
        s_mul_i32 s{sT2}, s{sNH}, 73728
        s_lshl_b32 s{sT0}, s{sKQ}, 10
        s_add_u32 s{sT2}, s{sT2}, s{sT0}
        """)
        for ks in range(18):
            so = ks * 36 * 1152 if ks < 16 else (ks - 16) * 288 * 1152
            a(f"s_add_u32 m0, s{sT2}, {ks * 4096}")
            a(f"s_mov_b32 s{sT0}, {so}")
            a(f"buffer_load_dwordx4 v{10 if ks < 16 else 11}, {sr(SWO, 4)}, s{sT0} offen lds")
        st.phase2_main(a)

    def phase2_main(self, a):
        st = self
        sKQ, sNH, sGRP, sCT = 4, 5, 6, 7
        sc = ""
        OF = 64
        ACC = 172
        WF = [220, 228, 236, 244]
        vA = [12, 13, 14, 15]
        vG = [16, 17, 18]
        a(f"""
        s_mov_b32 s{SWS}, s{pWS}
        s_and_b32 s{SWS + 1}, s{pWS + 1}, 0xffff
        s_mov_b32 s{SWS + 2}, {GATE_WS + 8192}
        s_mov_b32 s{SWS + 3}, 0x20000
        v_lshlrev_b32 v20, 4, v1
        s_mul_i32 s8, s{sGRP}, 5
        s_mul_i32 s{sT0}, s{sNH}, 3
        s_add_u32 s8, s8, s{sT0}
        s_lshr_b32 s{sT0}, s{sKQ}, 1
        s_mul_i32 s{sT0}, s{sT0}, {OBR}
        s_and_b32 s{sT1}, s{sKQ}, 1
        s_mul_i32 s{sT1}, s{sT1}, 9216
        s_add_u32 s9, s{sT0}, s{sT1}
        """)
        st.p2_wait(a)
        Lsk = a.label("n2")
        for n in range(3):
            a(f"""
            s_add_u32 s{12 + n}, s8, {n}
            s_min_u32 s{12 + n}, s{12 + n}, 127
            s_mul_i32 s{56 + n}, s{12 + n}, 18432
            s_add_u32 s{56 + n}, s{56 + n}, s9
            s_add_u32 s{59 + n}, s{56 + n}, 4096
            s_add_u32 s{62 - 0 + n + 6}, s{56 + n}, 8192
            """)
        so = lambda n, ks: f"s{[56, 59, 68][ks // 4] + n}"
        for ks in range(9):
            for n in range(2):
                a(f"buffer_load_dwordx4 {vr(OF + (n * 9 + ks) * 4, 4)}, v20, {sr(SWS, 4)}, {so(n, ks)} offen offset:{(ks % 4) * 1024}{sc}")
        a(f"s_cmp_eq_u32 s{sNH}, 0\ns_cbranch_scc0 {Lsk}")
        a.skip_begin()
        for ks in range(9):
            a(f"buffer_load_dwordx4 {vr(OF + (18 + ks) * 4, 4)}, v20, {sr(SWS, 4)}, {so(2, ks)} offen offset:{(ks % 4) * 1024}{sc}")
        a.skip_end()
        a(f"{Lsk}:")
        a(f"v_and_b32 v3, 15, v1\nv_lshrrev_b32 v2, 4, v1\nv_lshlrev_b32 v21, 2, v3")
        for n in range(3):
            a(f"""
            s_lshl_b32 s{sT0}, s{12 + n}, 6
            s_add_u32 s{sT0}, s{sT0}, {GATE_WS}
            buffer_load_dword v{vG[n]}, v21, {sr(SWS, 4)}, s{sT0} offen{sc}
            """)
        a(f"""
        v_bfe_u32 v4, v1, 2, 2
        v_and_b32 v5, 3, v1
        v_lshl_add_u32 v6, v2, 3, v4
        v_lshlrev_b32 v6, 7, v6
        v_lshl_add_u32 v6, v5, 3, v6
        v_lshrrev_b32 v7, 1, v4
        v_and_b32 v8, 1, v2
        v_lshl_or_b32 v7, v8, 1, v7
        v_xor_b32 v7, s{sKQ}, v7
        s_lshr_b32 s{sT0}, s{sKQ}, 1
        s_mul_i32 s{sT0}, s{sT0}, 73728
        s_and_b32 s{sT1}, s{sKQ}, 1
        s_mul_i32 s{sT1}, s{sT1}, 36864
        s_add_u32 s{sT0}, s{sT0}, s{sT1}
        v_add_u32 v6, s{sT0}, v6
        """)
        for u in range(4):
            a(f"v_xor_b32 v8, {u}, v7\nv_lshl_add_u32 v{vA[u]}, v8, 5, v6")
        for r in range(ACC, ACC + 48):
            a(f"v_mov_b32 v{r}, 0")
        if not st.fused:
            La, Lb = a.label("wv"), a.label("wv")
            a(f"""
            s_cmp_eq_u32 s{sNH}, 0
            s_cbranch_scc0 {La}
            s_waitcnt vmcnt(30)
            s_branch {Lb}
            {La}:
            s_waitcnt vmcnt(21)
            {Lb}:
            s_barrier
            """)
        st.stamp(a)
        Lp1, Lpd = a.label("p2b"), a.label("p2d")
        a(f"s_cmp_eq_u32 s{sNH}, 0\ns_cbranch_scc0 {Lp1}")
        for nn in (3, 2):
            if nn == 2:
                a(f"{Lp1}:")
            WB = lambda ks, u: 220 + ((ks & 1) * 4 + u) * 4
            def rd(ks):
                return [f"ds_read_b64_tr_b16 {vr(WB(ks, u) + 2 * jj, 2)}, v{vA[u]} offset:{ks * 4096 + jj * 512}"
                        for u in range(4) for jj in range(2)]
            for x in rd(0):
                a(x)
            for ks in range(9):
                if ks < 8:
                    for x in rd(ks + 1):
                        a(x)
                    a("s_waitcnt lgkmcnt(8)")
                else:
                    a("s_waitcnt lgkmcnt(0)")
                for n in range(nn):
                    if n < 2:
                        pos = ks * 2 + n
                    else:
                        pos = 18 + ks
                    tot = (27 if nn == 3 else 18) + 3
                    a(f"s_waitcnt vmcnt({tot - 1 - pos})")
                    for u in range(4):
                        d = ACC + (n * 4 + u) * 4
                        a(f"v_mfma_f32_16x16x32_bf16 {vr(d, 4)}, {vr(WB(ks, u), 4)}, {vr(OF + (n * 9 + ks) * 4, 4)}, {vr(d, 4)}")
            if nn == 3:
                a(f"s_branch {Lpd}")
        a(f"{Lpd}:")
        st.stamp(a)
        a(f"""
        s_nop 7
        s_barrier
        s_mul_i32 s{sT0}, s{sNH}, {3 * 16384}
        s_lshl_b32 s{sT1}, s{sKQ}, 12
        s_add_u32 s{sT1}, s{sT1}, s{sT0}
        """)
        for u in range(1, 4):
            a(f"""
            s_xor_b32 s{sT2}, s{sKQ}, {u}
            s_lshl_b32 s{60 + u}, s{sT2}, 10
            s_add_u32 s{60 + u}, s{60 + u}, s{sT1}
            v_add_u32 v{23 + u}, s{60 + u}, v20
            s_lshl_b32 s{sT2}, s{sT2}, 12
            s_add_u32 s{sT2}, s{sT2}, s{sT0}
            s_lshl_b32 s{70 + u}, s{sKQ}, 10
            s_add_u32 s{sT2}, s{sT2}, s{70 + u}
            v_add_u32 v{27 + u}, s{sT2}, v20
            """)
        L3 = a.label("x3")
        for n in range(3):
            if n == 2:
                a(f"s_cmp_eq_u32 s{sNH}, 0\ns_cbranch_scc0 {L3}")
                a.skip_begin()
            for u in range(1, 4):
                a(f"ds_write_b128 v{23 + u}, {vr(ACC + (n * 4 + u) * 4, 4)} offset:{n * 16384}")
            if n == 2:
                a.skip_end()
                a(f"{L3}:")
        a("s_waitcnt vmcnt(0)")
        a(f"s_mov_b32 s{sT2}, {LOG2E}")
        a(f"s_cmp_lt_u32 s{sKQ}, 2\ns_cselect_b64 vcc, -1, 0")
        cS, cO = [32, 33, 34], [35, 36, 37]
        for n in range(3):
            g = vG[n]
            a(f"""
            v_cvt_pk_bf16_f32 v{g}, v{g}, v{g}
            v_lshlrev_b32 v{g}, 16, v{g}
            v_mul_f32 v{g}, s{sT2}, v{g}
            v_exp_f32 v{g}, -v{g}
            v_add_f32 v{g}, 1.0, v{g}
            v_rcp_f32 v{g}, v{g}
            v_cvt_pk_bf16_f32 v{g}, v{g}, v{g}
            v_lshlrev_b32 v{g}, 16, v{g}
            v_sub_f32 v38, 1.0, v{g}
            v_cvt_pk_bf16_f32 v38, v38, v38
            v_lshlrev_b32 v38, 16, v38
            v_cndmask_b32 v{cS[n]}, v38, v{g}, vcc
            v_cndmask_b32 v{cO[n]}, v{g}, v38, vcc
            """)
        a(f"""
        s_mov_b32 s{SOUT}, s{pOUT}
        s_and_b32 s{SOUT + 1}, s{pOUT + 1}, 0xffff
        s_mov_b32 s{SOUT + 2}, {2048 * 1152}
        s_mov_b32 s{SOUT + 3}, 0x20000
        v_mul_u32_u24 v39, 2304, v3
        v_lshl_add_u32 v39, v2, 3, v39
        s_lshl_b32 s{sT0}, s{sCT}, 7
        s_lshl_b32 s{sT1}, s{sKQ}, 5
        s_add_u32 s{sT0}, s{sT0}, s{sT1}
        v_add_u32 v39, s{sT0}, v39
        """)
        for n in range(3):
            a(f"""
            s_add_u32 s{sT2}, s8, {n}
            s_lshr_b32 s{sT0}, s{sT2}, 3
            s_lshl_b32 s{sT0}, s{sT0}, 7
            s_and_b32 s{sT1}, s{sT2}, 3
            s_lshl_b32 s{sT1}, s{sT1}, 5
            s_add_u32 s{sT0}, s{sT0}, s{sT1}
            s_bfe_u32 s{sT1}, s{sT2}, 0x10002
            s_add_u32 s{sT0}, s{sT0}, s{sT1}
            s_mul_i32 s{56 + n}, s{sT0}, 1152
            s_mov_b32 s{12 + n}, s{sT2}
            """)
        a("s_waitcnt lgkmcnt(0)\ns_barrier")
        RB = OF
        L4 = a.label("x4")
        for n in range(3):
            if n == 2:
                a(f"s_cmp_eq_u32 s{sNH}, 0\ns_cbranch_scc0 {L4}")
                a.skip_begin()
            for u in range(1, 4):
                a(f"ds_read_b128 {vr(RB + (n * 4 + u) * 4, 4)}, v{27 + u} offset:{n * 16384}")
            if n == 2:
                a.skip_end()
                a(f"{L4}:")
        a("s_waitcnt lgkmcnt(0)")
        for n in range(3):
            Ln = a.label("fin")
            lim = 128
            if n == 2:
                a(f"s_cmp_eq_u32 s{sNH}, 0\ns_cbranch_scc0 {Ln}")
            a(f"s_cmp_lt_u32 s{12 + n}, 128\ns_cbranch_scc0 {Ln}")
            a.skip_begin()
            own = ACC + n * 16
            r1, r2, r3 = [RB + (n * 4 + u) * 4 for u in (1, 2, 3)]
            for r in range(4):
                a(f"v_add_f32 v{own + r}, v{own + r}, v{r1 + r}")
                a(f"v_add_f32 v{r2 + r}, v{r2 + r}, v{r3 + r}")
            P = 40

            def rnd(base):
                a(f"""
                v_cvt_pk_bf16_f32 v{P}, v{base}, v{base + 1}
                v_cvt_pk_bf16_f32 v{P + 1}, v{base + 2}, v{base + 3}
                v_lshlrev_b32 v{base}, 16, v{P}
                v_and_b32 v{base + 1}, 0xffff0000, v{P}
                v_lshlrev_b32 v{base + 2}, 16, v{P + 1}
                v_and_b32 v{base + 3}, 0xffff0000, v{P + 1}
                """)
            rnd(own)
            rnd(r2)
            for r in range(4):
                a(f"v_mul_f32 v{own + r}, v{own + r}, v{cS[n]}")
                a(f"v_mul_f32 v{r2 + r}, v{r2 + r}, v{cO[n]}")
            rnd(own)
            rnd(r2)
            for r in range(4):
                a(f"v_add_f32 v{own + r}, v{own + r}, v{r2 + r}")
            a(f"""
            v_cvt_pk_bf16_f32 v{44 + 2 * n}, v{own}, v{own + 1}
            v_cvt_pk_bf16_f32 v{45 + 2 * n}, v{own + 2}, v{own + 3}
            buffer_store_dwordx2 {vr(44 + 2 * n, 2)}, v39, {sr(SOUT, 4)}, s{56 + n} offen
            """)
            a.skip_end()
            a(f"{Ln}:")
        st.stamp(a)

    def p2_tile(self, a, sg, sc_):
        a(f"""
        s_mul_i32 s{sT0}, s{sXCD}, 29
        s_min_u32 s{sT1}, s{sXCD}, 2
        s_add_u32 s{sT0}, s{sT0}, s{sT1}
        s_add_u32 s{sT0}, s{sT0}, s{sIDX}
        s_mul_i32 s{sg}, s{sT0}, 57
        s_lshr_b32 s{sg}, s{sg}, 9
        s_mul_i32 s{sT1}, s{sg}, 9
        s_sub_u32 s{sc_}, s{sT0}, s{sT1}
        s_cmp_lt_u32 s{sXCD}, 2
        s_cselect_b32 s{sT1}, 30, 29
        s_cmp_lt_u32 s{sIDX}, s{sT1}
        """)

    def wo_setup(self, a):
        sKQ, sNH = sH, sP
        self.p2_tile(a, sGRP2, sCT2)
        a(f"""
        s_mov_b32 s{SWO}, s{pAO}
        s_and_b32 s{SWO + 1}, s{pAO + 1}, 0xffff
        s_mov_b32 s{SWO + 2}, {576 * 1152}
        s_mov_b32 s{SWO + 3}, 0x20000
        s_mov_b32 s{SWO2}, s{pBO}
        s_and_b32 s{SWO2 + 1}, s{pBO + 1}, 0xffff
        s_mov_b32 s{SWO2 + 2}, {576 * 1152}
        s_mov_b32 s{SWO2 + 3}, 0x20000
        s_lshl_b32 s{sWL}, s{sW}, 10
        v_lshrrev_b32 v216, 3, v1
        v_and_b32 v217, 7, v1
        v_bfe_u32 v4, v216, 1, 1
        s_and_b32 s{sT0}, s{sKQ}, 1
        s_lshl_b32 s{sT1}, s{sT0}, 1
        v_or_b32 v4, s{sT1}, v4
        v_lshrrev_b32 v5, 1, v217
        v_xor_b32 v5, v5, v4
        v_and_b32 v6, 1, v217
        v_lshlrev_b32 v6, 4, v6
        v_lshl_add_u32 v6, v5, 5, v6
        s_lshl_b32 s{sT1}, s{sCT2}, 7
        v_add_u32 v6, s{sT1}, v6
        s_lshr_b32 s{sT1}, s{sKQ}, 1
        s_mul_i32 s{sT1}, s{sT1}, 20
        s_lshl_b32 s{sT0}, s{sT0}, 3
        s_add_u32 s{sT1}, s{sT1}, s{sT0}
        s_mul_i32 s{sT0}, s{sNH}, 36
        s_add_u32 s{sT1}, s{sT1}, s{sT0}
        v_add_u32 v7, s{sT1}, v216
        v_mul_u32_u24 v7, 1152, v7
        v_add_u32 v242, v7, v6
        v_lshrrev_b32 v7, 1, v216
        v_mul_u32_u24 v8, 18, v7
        v_and_b32 v7, 1, v7
        v_xor_b32 v7, 1, v7
        v_lshl_add_u32 v8, v7, 4, v8
        v_and_b32 v7, 1, v216
        v_add_u32 v8, v8, v7
        s_mul_i32 s{sT1}, s{sW}, 72
        v_add_u32 v8, s{sT1}, v8
        v_mul_u32_u24 v8, 1152, v8
        v_add_u32 v243, v8, v6
        """)

    def wo_piece(self, a, i):
        br, k = divmod(i, 9)
        srd = sr(SWO2 if br else SWO, 4)
        a(f"s_add_u32 m0, s{sWL}, {br * 73728 + k * 8192}")
        if k == 8:
            a(f"buffer_load_dwordx4 v243, {srd}, 0 offen lds")
        elif k == 0:
            a(f"buffer_load_dwordx4 v242, {srd}, 0 offen lds")
        else:
            a(f"s_mov_b32 s{sWT}, {k * 82944}")
            a(f"buffer_load_dwordx4 v242, {srd}, s{sWT} offen lds")

    def p1_signal(self, a):
        L = a.label("nofl")
        a(f"""
        s_lshl_b32 s{sT0}, s{sRT}, 4
        s_add_u32 s{sT0}, s{sT0}, s{sHGB}
        v_mov_b32 v2, s{sT0}
        v_mov_b32 v3, 1
        s_waitcnt vmcnt(0)
        s_barrier
        s_cmp_eq_u32 s{sW}, 0
        s_cbranch_scc0 {L}
        """)
        a.skip_begin()
        a(f"""
        s_mov_b64 exec, 1
        global_store_byte v2, v3, {sr(pDBG, 2)} sc0 sc1
        s_mov_b64 exec, -1
        """)
        a.skip_end()
        a(f"{L}:")

    def p2_wait(self, a):
        if not self.fused:
            return
        L, Lp, Ld = a.label("np"), a.label("poll"), a.label("pd")
        a(f"""
        s_cmp_eq_u32 s{sW}, 0
        s_cbranch_scc0 {L}
        """)
        a.skip_begin()
        a(f"""
        s_mul_i32 s{sT0}, s6, 5
        s_add_u32 s{sT1}, s{sT0}, 4
        s_min_u32 s{sT1}, s{sT1}, 127
        s_lshr_b32 s{sT0}, s{sT0}, 3
        s_lshr_b32 s{sT1}, s{sT1}, 3
        s_lshl_b32 s{sT0}, s{sT0}, 4
        s_lshl_b32 s{sT1}, s{sT1}, 4
        v_and_b32 v40, 3, v1
        v_lshlrev_b32 v40, 2, v40
        v_mov_b32 v41, s{sT0}
        v_mov_b32 v42, s{sT1}
        v_cmp_gt_u32 vcc, 4, v1
        v_cndmask_b32 v41, v42, v41, vcc
        v_add_u32 v40, v40, v41
        s_mov_b32 s{sT2}, 0
        s_mov_b64 exec, 0xff
        {Lp}:
        global_load_dword v41, v40, {sr(pDBG, 2)} sc0 sc1
        s_add_u32 s{sT2}, s{sT2}, 1
        s_waitcnt vmcnt(0)
        v_cmp_ne_u32 vcc, 0x01010101, v41
        s_cmp_eq_u64 vcc, 0
        s_cbranch_scc1 {Ld}
        s_cmp_lt_u32 s{sT2}, 0x4000
        s_cbranch_scc1 {Lp}
        {Ld}:
        s_mov_b64 exec, -1
        """)
        a.skip_end()
        a(f"{L}:\ns_barrier")
        self.stamp_nw(a)

    def build(self):
        if not self.fused:
            K1, K2 = "p1_kernel", "p2_kernel"
            a = Asm()
            self.ids(a)
            self.phase1(a)
            self.stamp_store(a, STAMP_WS, 32)
            a(".Lend:\ns_endpgm")
            t1 = a.text()
            b = Asm()
            b.nlab = 1000
            self.nst = 0
            self.ids(b)
            self.phase2_setup(b)
            self.phase2(b)
            self.stamp_store(b, STAMP_WS + (1 << 20), 32)
            b(".Lend:\ns_endpgm")
            t2 = b.text().replace(".Lend", ".Lend2")
            s = header([(K1, 256, 512, LDS_BYTES), (K2, 256, 512, LDS_BYTES)])
            s += kernel_open(K1) + t1 + kernel_open(K2) + t2
            s += '.section .rodata,"a"\n' + kd(K1, 256) + kd(K2, 256)
            sys.stderr.write(f"nops inserted: {a.nops} {b.nops}\n")
            return s
        K = NAME + "_kernel"
        a = Asm()
        self.ids(a)
        self.phase1(a)
        self.p1_signal(a)
        self.stamp(a)
        self.p2_tile(a, 6, 7)
        Lt = a.label("tile")
        a(f"s_cbranch_scc1 {Lt}")
        self.stamp_store(a, STAMP_WS, 32)
        a(f"s_endpgm\n{Lt}:")
        a(f"v_and_b32 v1, 63, v0")
        self.phase2_main(a)
        self.stamp_store(a, STAMP_WS, 32)
        a(".Lend:\ns_endpgm")
        s = header([(K, 256, 512, LDS_BYTES)])
        s += kernel_open(K) + a.text()
        s += '.section .rodata,"a"\n' + kd(K, 256)
        sys.stderr.write(f"nops inserted: {a.nops}\n")
        return s


if __name__ == "__main__":
    import argparse
    ap = argparse.ArgumentParser()
    ap.add_argument("-o", default="k2.s")
    ap.add_argument("--fused", action="store_true")
    ap.add_argument("--stamps", action="store_true")
    ap.add_argument("--abl", default="")
    x = ap.parse_args()
    open(x.o, "w").write(Gen(fused=x.fused, stamps=x.stamps, abl=x.abl).build())
```

```python
import sys, struct
from asm2 import *

STG = 46080
WOFF = 18432
GOFF = 138240
EX = 147456
EXQ = EX
EXV = EX + 5120
EXD = EX + 10240
LDS_BYTES = 163840
OBR = 128 * 18432
GATE_WS = 2 * OBR
STAMP_WS = 8 << 20
FLAG_WS = 6 << 20
NEG = 0xf149f2ca
SCALE = struct.unpack("<I", struct.pack("<f", 18 ** -0.5))[0]
LOG2E = 0x3fb8aa3b

sW, sH, sP, sRT, sHGB, sBR, sHG, sIDX, sXCD = 3, 4, 5, 6, 7, 8, 9, 10, 11
sJ, sST, sSLW, sE = 12, 13, 14, 15
KA = 16
pAX, pAW, pAO, pBX, pBW, pBO, pGW, pOUT, pDBG, pWS = [KA + 2 * i for i in range(10)]
SX, SW, S5, SWS = 40, 44, 48, 52
sOX, sOW, sO5, sL5, sRS, sRST, sDW, sDG, sT0, sT1, sT2, sHGO = 56, 57, 58, 59, 60, 61, 62, 63, 64, 65, 66, 67
sM0 = 68
sSTAMP = 80
SWO, SOUT = 96, 40
SWO2 = 36
sGRP2, sCT2, sWL, sWT = 78, 79, 100, 101


class Gen:
    def __init__(self, fused=False, stamps=False, abl=""):
        self.abl = abl
        self.lst = stamps and 'L' in abl
        self.fused = fused
        self.stamps = stamps
        self.nst = 0
        self.stampw = 0
        self.pend = []
        self.nnw = 0

    def stamp(self, a, wait=True):
        if self.stamps:
            a(f"s_memrealtime {sr(sSTAMP, 2)}")
            if wait:
                a(f"s_memtime {sr(sSTAMP + 8, 2)}")
                a("s_waitcnt lgkmcnt(0)")
                a(f"v_writelane_b32 v31, s{sSTAMP}, {self.nst}")
                a(f"v_writelane_b32 v31, s{sSTAMP + 8}, {self.nst + 8}")
                self.nst += 1
                for lane, sp in self.pend:
                    a(f"v_writelane_b32 v31, s{sp}, {lane}")
                self.pend = []

    def stamp_nw(self, a):
        if self.stamps:
            sp = sSTAMP + 10 + 2 * len(self.pend)
            assert len(self.pend) < 3
            a(f"s_memrealtime {sr(sp, 2)}")
            self.pend.append((25 + self.nnw, sp))
            self.nnw += 1

    def stamp_store(self, a, base, tmpv):
        if not self.stamps:
            return
        if 'T' in self.abl:
            a(f"v_and_b32 v{tmpv}, 63, v0\nv_lshlrev_b32 v{tmpv}, 2, v{tmpv}\nv_not_b32 v{tmpv + 1}, v31")
            a(f"s_mov_b64 exec, {(1 << self.nst) - 1}")
            a(f"global_atomic_umax v{tmpv}, v31, {sr(pDBG, 2)} sc1")
            a(f"global_atomic_umax v{tmpv}, v{tmpv + 1}, {sr(pDBG, 2)} offset:32 sc1")
            a("s_mov_b64 exec, -1")
            return
        a(f"s_lshl_b32 s{sT0}, s2, 11\ns_add_u32 s{sT0}, s{sT0}, {base}")
        a(f"v_lshlrev_b32 v{tmpv}, 2, v0\nv_add_u32 v{tmpv}, s{sT0}, v{tmpv}")
        a(f"global_store_dword v{tmpv}, v31, {sr(pWS, 2)}")

    def ids(self, a):
        a(f"""
        s_cmp_ge_u32 s2, 256
        s_cbranch_scc1 .Lend
        s_load_dwordx16 {sr(KA, 16)}, s[0:1], 0
        s_load_dwordx4 {sr(KA + 16, 4)}, s[0:1], 64
        """)
        self.stamp(a)
        a(f"""
        v_lshrrev_b32 v2, 6, v0
        v_and_b32 v1, 63, v0
        v_readfirstlane_b32 s{sW}, v2
        s_and_b32 s{sXCD}, s2, 7
        s_lshr_b32 s{sIDX}, s2, 3
        """)

    def wgmap(self):
        if 'X' in self.abl or 'Y' in self.abl or 'Z' in self.abl:
            t = f"""
            s_lshl_b32 s{sT0}, s{sXCD}, 1
            s_and_b32 s{sT1}, s{sIDX}, 1
            s_add_u32 s{sRT}, s{sT0}, s{sT1}
            s_lshr_b32 s{sHGB}, s{sIDX}, 1
            """
            if 'X' in self.abl:
                t += f"s_add_u32 s{sST}, s{sHGB}, s{sXCD}\n"
            elif 'Y' in self.abl:
                t += f"s_mov_b32 s{sST}, s{sXCD}\n"
            else:
                t += f"s_mov_b32 s{sST}, s{sHGB}\n"
            t += f"""
            s_sub_u32 s{sT0}, s{sST}, 18
            s_cmp_ge_u32 s{sST}, 18
            s_cselect_b32 s{sST}, s{sT0}, s{sST}
            s_sub_u32 s{sT0}, s{sST}, 9
            s_cmp_ge_u32 s{sST}, 9
            s_cselect_b32 s{sST}, s{sT0}, s{sST}
            """
            return t
        return f"""
        s_and_b32 s{sT0}, s{sXCD}, 1
        s_lshl_b32 s{sT0}, s{sT0}, 3
        s_and_b32 s{sT1}, s{sIDX}, 7
        s_add_u32 s{sRT}, s{sT0}, s{sT1}
        s_lshr_b32 s{sT0}, s{sXCD}, 1
        s_lshl_b32 s{sT0}, s{sT0}, 2
        s_lshr_b32 s{sT2}, s{sIDX}, 3
        s_add_u32 s{sHGB}, s{sT0}, s{sT2}
        s_lshl_b32 s{sT2}, s{sT2}, 1
        s_add_u32 s{sST}, s{sT1}, s{sT2}
        s_sub_u32 s{sT0}, s{sST}, 9
        s_cmp_ge_u32 s{sST}, 9
        s_cselect_b32 s{sST}, s{sT0}, s{sST}
        """

    def phase1(self, a):
        st = self
        vD = [10, 11, 12, 13, 14, 15]
        vXA, vXL, vXH = [16, 17], [18, 19], [20, 21]
        vWA, vWQ = 22, 23
        vWV = [24, 25, 26, 27]
        vDl, vIsG = 28, 29
        FA, FB = 32, 76
        fr = lambda base: dict(X=[base + 4 * t for t in range(4)], XL=base + 16, XH=base + 20, WQ=base + 24,
                               WK=base + 28, WV=base + 32, WQL=base + 36, WVL=base + 40)
        A_, B_ = fr(FA), fr(FB)
        aQ = [120 + 4 * t for t in range(4)]
        aK = [136 + 4 * t for t in range(4)]
        aV = [152 + 4 * t for t in range(4)]
        aKH, aVH, aQL, aVL, aE = 168, 172, 176, 180, 184
        cOwn, cPrev, cPrev0 = 188, 192, 196
        mO, mP, mQ = 200, 202, 204
        vEW, vEWE, vEQ = 206, 207, 208
        vEV = [209, 210, 211, 212]
        vSO, vSL, vSG = 213, 214, 215
        m27, s27 = magic(27, 2047)

        a(f"""
        {st.wgmap()}
        s_mov_b32 s{sRST}, s{sST}
        s_lshr_b32 s{sBR}, s{sHGB}, 3
        s_and_b32 s{sHG}, s{sHGB}, 7
        s_mul_i32 s{sHGO}, s{sHG}, 144
        s_and_b32 s{sH}, s{sW}, 3
        s_lshr_b32 s{sP}, s{sW}, 2
        v_lshrrev_b32 v3, 3, v1
        v_and_b32 v4, 7, v1
        v_xor_b32 v4, v4, v3
        v_mul_u32_u24 v5, 2304, v3
        v_lshl_add_u32 v5, v4, 4, v5
        s_lshl_b32 s{sT0}, s{sRT}, 7
        s_lshl_b32 s{sT1}, s{sW}, 4
        s_add_u32 s{sT1}, s{sT1}, s{sT0}
        s_mul_i32 s{sT1}, s{sT1}, 1152
        v_add_u32 v{vD[0]}, s{sT1}, v5
        v_add_u32 v{vD[1]}, 1152, v{vD[0]}
        s_lshl_b32 s{sSLW}, s{sW}, 10
        s_waitcnt lgkmcnt(0)
        s_mov_b32 s{SX}, s{pAX}
        s_and_b32 s{SX + 1}, s{pAX + 1}, 0xffff
        s_mov_b32 s{SX + 2}, {2048 * 1152}
        s_mov_b32 s{SX + 3}, 0x20000
        s_cmp_eq_u32 s{sBR}, 1
        s_cselect_b32 s{SW}, s{pBW}, s{pAW}
        s_cselect_b32 s{SW + 1}, s{pBW + 1}, s{pAW + 1}
        s_and_b32 s{SW + 1}, s{SW + 1}, 0xffff
        s_mov_b32 s{SW + 2}, {576 * 3456}
        s_mov_b32 s{SW + 3}, 0x20000
        """)
        Lg = a.label("nogate")
        a(f"""
        s_lshl_b32 s{sT0}, s{sHGB}, 3
        s_add_u32 s{sT0}, s{sT0}, s{sW}
        s_cmp_lt_u32 s{sT0}, 5
        s_cbranch_scc0 {Lg}
        """)
        a.skip_begin()
        a(f"""
        v_min_u32 v6, 287, v0
        v_lshlrev_b32 v6, 2, v6
        global_load_dword v30, v6, {sr(pGW, 2)}
        """)
        a.skip_end()
        a(f"{Lg}:")

        def waddr(n, out):
            a(f"""
            v_mul_u32_u24 v6, {m27}, v{n}
            v_lshrrev_b32 v6, {s27}, v6
            v_mul_u32_u24 v7, 27, v6
            v_sub_u32 v7, v{n}, v7
            v_mul_u32_u24 v8, 57, v7
            v_lshrrev_b32 v8, 9, v8
            v_bfe_u32 v9, v6, 1, 2
            v_and_or_b32 v9, v6, 56, v9
            v_and_b32 v6, 1, v6
            v_lshl_or_b32 v9, v6, 2, v9
            v_mul_u32_u24 v9, 3456, v9
            v_lshl_add_u32 v9, v7, 4, v9
            v_mul_u32_u24 v8, 1008, v8
            v_add_u32 v{out}, v9, v8
            """)

        def soffs():
            a(f"""
            s_lshl_b32 s{sOX}, s{sST}, 7
            s_mul_i32 s{sOW}, s{sST}, {64 * 3456}
            s_add_u32 s{sOW}, s{sOW}, s{sHGO}
            s_cmp_lt_u32 s{sW}, 2
            s_cselect_b32 s{sO5}, s{sOX}, s{sOW}
            """)

        def dma(j):
            if j < 2:
                return [f"s_add_u32 m0, s{sSLW}, {8192 * j}",
                        f"buffer_load_dwordx4 v{vD[j]}, {sr(SX, 4)}, s{sOX} offen lds"]
            if j < 5:
                return [f"s_add_u32 m0, s{sSLW}, {WOFF + 8192 * (j - 2)}",
                        f"buffer_load_dwordx4 v{vD[j]}, {sr(SW, 4)}, s{sOW} offen lds"]
            raise ValueError

        def dma5():
            L = a.label("no5")
            a(f"s_cmp_lt_u32 s{sW}, 5\ns_cbranch_scc0 {L}")
            a.skip_begin()
            a(f"s_add_u32 m0, s{sSLW}, s{sL5}")
            a(f"buffer_load_dwordx4 v{vD[5]}, {sr(S5, 4)}, s{sO5} offen lds")
            a.skip_end()
            a(f"{L}:")

        def adv_dma():
            a(f"""
            s_add_u32 s{sST}, s{sST}, 1
            s_cmp_eq_u32 s{sST}, 9
            s_cselect_b32 s{sST}, 0, s{sST}
            s_add_u32 s{sSLW}, s{sSLW}, {STG}
            s_sub_u32 s{sT0}, s{sSLW}, {3 * STG}
            s_cmp_ge_u32 s{sSLW}, {3 * STG}
            s_cselect_b32 s{sSLW}, s{sT0}, s{sSLW}
            """)

        soffs()
        st.stamp_nw(a)
        for j in range(2):
            a("\n".join(dma(j)))
        waddr(0, vD[2])
        a("\n".join(dma(2)))
        a(f"v_add_u32 v2, 512, v0")
        waddr(2, vD[3])
        a("\n".join(dma(3)))
        a(f"v_add_u32 v2, 1024, v0")
        waddr(2, vD[4])
        a("\n".join(dma(4)))
        a(f"v_add_u32 v2, 1408, v0")
        waddr(2, vD[5])
        a(f"""
        s_lshl_b32 s{sT0}, s{sRT}, 7
        s_sub_u32 s{sT0}, s{sT0}, 16
        s_max_i32 s{sT0}, s{sT0}, 0
        s_add_u32 s{sT0}, s{sT0}, s{sW}
        s_mul_i32 s{sT0}, s{sT0}, 1152
        v_add_u32 v5, s{sT0}, v5
        s_cmp_lt_u32 s{sW}, 2
        s_cselect_b64 vcc, -1, 0
        s_cselect_b32 s{S5}, s{SX}, s{SW}
        s_cselect_b32 s{S5 + 1}, s{SX + 1}, s{SW + 1}
        s_cselect_b32 s{S5 + 2}, s{SX + 2}, s{SW + 2}
        s_mov_b32 s{S5 + 3}, 0x20000
        s_mov_b32 s{sL5}, {40 * 1024}
        s_cselect_b32 s{sL5}, {16 * 1024}, s{sL5}
        v_cndmask_b32 v{vD[5]}, v{vD[5]}, v5, vcc
        """)
        dma5()
        st.stamp_nw(a)
        adv_dma()
        soffs()
        for j in range(5):
            a("\n".join(dma(j)))
        dma5()
        st.stamp_nw(a)
        adv_dma()

        a(f"""
        v_lshrrev_b32 v2, 4, v1
        v_and_b32 v3, 15, v1
        v_bfe_u32 v4, v1, 2, 2
        v_and_b32 v5, 3, v1
        v_and_b32 v6, 7, v3
        v_xor_b32 v7, v2, v6
        v_lshlrev_b32 v7, 4, v7
        v_lshl_add_u32 v8, v3, 7, v7
        s_lshl_b32 s{sT0}, s{sP}, 13
        v_add_u32 v{vXA[0]}, s{sT0}, v8
        v_xor_b32 v{vXA[1]}, 64, v{vXA[0]}
        s_lshl_b32 s{sT0}, s{sW}, 11
        v_add_u32 v{vXL[0]}, s{sT0}, v8
        v_xor_b32 v{vXL[1]}, 64, v{vXL[0]}
        v_lshl_add_u32 v8, v6, 7, v7
        s_lshl_b32 s{sT0}, s{sP}, 10
        s_add_u32 s{sT0}, s{sT0}, 16384
        v_add_u32 v{vXH[0]}, s{sT0}, v8
        v_xor_b32 v{vXH[1]}, 64, v{vXH[0]}
        ; W rows: (8g+2r)*432
        v_lshlrev_b32 v6, 2, v2
        v_add_u32 v6, v6, v4
        v_mul_u32_u24 v6, 864, v6
        ; hoff(h) = 36h + (h&1)*4
        s_mul_i32 s{sT0}, s{sH}, 36
        s_and_b32 s{sT1}, s{sH}, 1
        s_lshl_b32 s{sT1}, s{sT1}, 2
        s_add_u32 s{sT0}, s{sT0}, s{sT1}
        s_add_u32 s{sT0}, s{sT0}, {WOFF}
        v_lshl_add_u32 v7, v5, 3, v6
        v_add_u32 v{vWA}, s{sT0}, v7
        v_mul_u32_u24 v7, 72, v5
        v_add3_u32 v{vWQ}, v6, v7, 32
        v_add_u32 v{vWQ}, {WOFF}, v{vWQ}
        v_lshl_add_u32 v7, v2, 3, v4
        v_lshlrev_b32 v7, 3, v7
        s_lshl_b32 s{sT0}, s{sRST}, 9
        s_add_u32 s{sT0}, s{sT0}, {GOFF}
        v_add_u32 v7, s{sT0}, v7
        v_lshrrev_b32 v{vIsG}, 1, v5
        v_cmp_eq_u32 vcc, 1, v{vIsG}
        """)
        for kk in range(2):
            for jj in range(2):
                a(f"""
                v_add_u32 v8, {288 + (32 * kk + jj) * 432}, v{vWQ}
                v_add_u32 v9, {(32 * kk + 4 * jj) * 8}, v7
                v_cndmask_b32 v{vWV[2 * kk + jj]}, v8, v9, vcc
                """)
        a(f"""
        s_lshl_b32 s{sT0}, s{sP}, 1
        s_sub_u32 s{sE}, s{sH}, s{sT0}
        s_mov_b32 s{sJ}, 0
        s_mov_b32 s{sRS}, 0
        """)
        for r in list(range(FB, FB + 44)) + list(range(120, 188)):
            a(f"v_mov_b32 v{r}, 0")

        a(f"""
        v_lshlrev_b32 v6, 2, v2
        v_sub_u32 v6, v3, v6
        v_mov_b32 v9, {NEG}
        """)
        for r in range(4):
            a(f"""
            v_subrev_u32 v7, {r}, v6
            v_cmp_gt_u32 vcc, 8, v7
            v_cmp_gt_i32 {sr(sM0, 2)}, -8, v7
            v_cmp_le_i32 {sr(sM0 + 2, 2)}, 0, v7
            v_cndmask_b32 v{cOwn + r}, v9, 0, vcc
            v_cndmask_b32 v{cPrev + r}, v9, 0, {sr(sM0, 2)}
            v_cndmask_b32 v{216 + r}, 0, -1, {sr(sM0 + 2, 2)}
            """)
        a(f"""
        v_and_b32 v216, 0xffff, v216
        v_and_b32 v217, 0xffff0000, v217
        v_and_b32 v218, 0xffff, v218
        v_and_b32 v219, 0xffff0000, v219
        v_or_b32 v{mO}, v216, v217
        v_or_b32 v{mO + 1}, v218, v219
        v_not_b32 v{mP}, v{mO}
        v_not_b32 v{mP + 1}, v{mO + 1}
        s_cmp_eq_u32 s{sRT}, 0
        s_cselect_b64 vcc, -1, 0
        """)
        for r in range(4):
            a(f"v_cndmask_b32 v{cPrev0 + r}, v{cPrev + r}, v9, vcc")
        a(f"""
        s_and_b32 s{sT0}, s{sH}, 1
        s_cmp_eq_u32 s{sT0}, 0
        s_cselect_b32 s{sM0}, 0xffff, 0
        s_cselect_b32 s{sM0 + 2}, 0, 0xffff
        s_mov_b32 s{sM0 + 1}, 0
        s_mov_b32 s{sM0 + 3}, 0
        v_cndmask_b32 v{mQ}, 0, -1, {sr(sM0, 2)}
        v_cndmask_b32 v{mQ + 1}, 0, -1, {sr(sM0 + 2, 2)}
        s_mul_i32 s{sT0}, s{sP}, 2560
        s_lshl_b32 s{sT1}, s{sH}, 9
        s_add_u32 s{sT1}, s{sT1}, s{sT0}
        s_add_u32 s{sT1}, s{sT1}, {EXQ + 512}
        v_lshlrev_b32 v6, 3, v1
        v_add_u32 v{vEW}, s{sT1}, v6
        s_add_u32 s{sT1}, s{sT0}, {EXQ}
        s_add_u32 s{sT2}, s{sT0}, {EXV}
        s_cmp_eq_u32 s{sE}, 1
        s_cselect_b32 s{sT1}, s{sT2}, s{sT1}
        s_cmp_lt_u32 s{sE}, 2
        s_cselect_b32 s{sT1}, s{sT1}, {EXD}
        v_add_u32 v{vEWE}, s{sT1}, v6
        s_lshr_b32 s{sT1}, s{sH}, 1
        s_lshl_b32 s{sT1}, s{sT1}, 7
        s_add_u32 s{sT1}, s{sT1}, s{sT0}
        s_add_u32 s{sT1}, s{sT1}, {EXQ}
        v_lshlrev_b32 v6, 3, v3
        v_add_u32 v{vEQ}, s{sT1}, v6
        s_lshl_b32 s{sT1}, s{sH}, 4
        v_xor_b32 v6, s{sT1}, v6
        v_lshl_add_u32 v6, v2, 7, v6
        """)
        for t in range(4):
            a(f"v_xor_b32 v7, {32 * t}, v6\nv_add_u32 v{vEV[t]}, s{sT2}, v7")
        a(f"""
        s_mov_b32 s{SWS}, s{pWS}
        s_and_b32 s{SWS + 1}, s{pWS + 1}, 0xffff
        s_mov_b32 s{SWS + 2}, {GATE_WS + 8192}
        s_mov_b32 s{SWS + 3}, 0x20000
        s_lshl_b32 s{sT0}, s{sRT}, 3
        s_lshl_b32 s{sT1}, s{sP}, 2
        s_add_u32 s{sT0}, s{sT0}, s{sT1}
        s_mul_i32 s{sT0}, s{sT0}, 18432
        s_mul_i32 s{sT1}, s{sBR}, {OBR}
        s_add_u32 s{sT0}, s{sT0}, s{sT1}
        s_lshl_b32 s{sT1}, s{sHG}, 11
        s_lshl_b32 s{sT2}, s{sH}, 9
        s_add_u32 s{sT1}, s{sT1}, s{sT2}
        s_add_u32 s{sT1}, s{sT1}, s{sT0}
        v_and_b32 v6, 1, v2
        v_mul_u32_u24 v6, 18432, v6
        v_lshrrev_b32 v7, 1, v2
        v_lshl_add_u32 v6, v7, 8, v6
        v_lshl_add_u32 v6, v3, 4, v6
        v_add_u32 v{vSO}, s{sT1}, v6
        s_lshl_b32 s{sT1}, s{sHG}, 8
        s_lshl_b32 s{sT2}, s{sH}, 2
        s_add_u32 s{sT1}, s{sT1}, s{sT2}
        s_add_u32 s{sT1}, s{sT1}, s{sT0}
        s_add_u32 s{sT1}, s{sT1}, 16384
        v_mul_u32_u24 v6, 18432, v2
        v_lshl_add_u32 v6, v3, 4, v6
        v_add_u32 v{vSL}, s{sT1}, v6
        s_lshl_b32 s{sT1}, s{sRT}, 3
        s_add_u32 s{sT1}, s{sT1}, s{sW}
        s_lshl_b32 s{sT1}, s{sT1}, 6
        s_add_u32 s{sT1}, s{sT1}, {GATE_WS}
        v_lshlrev_b32 v6, 4, v2
        v_add_u32 v{vSG}, s{sT1}, v6
        """)
        if st.fused:
            st.wo_setup(a)
        Lg2 = a.label("nogate2")
        a(f"""
        s_lshl_b32 s{sT0}, s{sHGB}, 3
        s_add_u32 s{sT0}, s{sT0}, s{sW}
        s_cmp_lt_u32 s{sT0}, 5
        s_cbranch_scc0 {Lg2}
        """)
        a.skip_begin()
        a(f"""
        v_min_u32 v6, 287, v0
        v_lshlrev_b32 v6, 4, v6
        v_mov_b32 v217, 0
        v_mov_b32 v219, 0
        s_waitcnt vmcnt(12)
        v_and_b32 v216, 0xffff, v30
        v_lshrrev_b32 v218, 16, v30
        ds_write_b128 v6, v[216:219] offset:{GOFF - 2 * STG}
        """.replace("v_lshlrev_b32 v6, 4, v6", f"v_lshlrev_b32 v6, 4, v6\nv_add_u32 v6, {2 * STG}, v6"))
        a.skip_end()
        a(f"{Lg2}:")
        st.stamp(a)

        def reads(F, kk):
            o = lambda sec, jj: (32 * kk + jj) * 432 + sec * 144
            L = []
            tr = lambda dst, adr, off: f"ds_read_b64_tr_b16 {vr(dst, 2)}, v{adr} offset:{off}"
            L += [tr(F['WQ'] + 2 * jj, vWA, o(0, jj)) for jj in range(2)]
            L += [f"ds_read_b128 {vr(F['X'][t], 4)}, v{vXA[kk]} offset:{2048 * t}" for t in range(4)]
            L += [tr(F['WK'] + 2 * jj, vWA, o(1, jj)) for jj in range(2)]
            L += [f"ds_read_b128 {vr(F['XH'], 4)}, v{vXH[kk]}"]
            L += [tr(F['WV'] + 2 * jj, vWA, o(2, jj)) for jj in range(2)]
            L += [f"ds_read_b128 {vr(F['XL'], 4)}, v{vXL[kk]}"]
            L += [tr(F['WQL'] + 2 * jj, vWQ, o(0, jj)) for jj in range(2)]
            L += [tr(F['WVL'] + 2 * jj, vWV[2 * kk + jj], 0) for jj in range(2)]
            if 'r' in st.abl:
                L = ["s_nop 0"] * len(L)
            if 'x' in st.abl:
                L = [l if 'b128' in l else "s_nop 0" for l in L]
            if 'w' in st.abl:
                L = [l if 'b128' not in l else "s_nop 0" for l in L]
            return L

        mf = lambda d, x, y: f"v_mfma_f32_16x16x32_bf16 {vr(d, 4)}, {vr(x, 4)}, {vr(y, 4)}, {vr(d, 4)}"

        def mfmas(F):
            L = [mf(aQ[t], F['WQ'], F['X'][t]) for t in range(4)]
            L += [mf(aK[t], F['WK'], F['X'][t]) for t in range(4)]
            L += [mf(aKH, F['WK'], F['XH'])]
            L += [mf(aV[t], F['X'][t], F['WV']) for t in range(4)]
            L += [mf(aVH, F['XH'], F['WV'])]
            L += [mf(aQL, F['WQL'], F['XL']), mf(aVL, F['XL'], F['WVL'])]
            if 'm' in st.abl:
                L = ["s_nop 0"] * len(L)
            return L

        def extra(F):
            L1, L2 = a.label("e"), a.label("e")
            a(f"s_cmp_eq_u32 s{sE}, 0\ns_cbranch_scc0 {L1}")
            a.skip_begin()
            a(mf(aE, F['WQL'], F['XH']))
            a.skip_end()
            a(f"{L1}:\ns_cmp_eq_u32 s{sE}, 1\ns_cbranch_scc0 {L2}")
            a.skip_begin()
            a(mf(aE, F['XH'], F['WVL']))
            a.skip_end()
            a(f"{L2}:")

        Lw5, Lw0, Lwd = a.label("w5"), a.label("w0"), a.label("wd")
        Lnd, Lnd2 = a.label("nodma"), a.label("nodma")
        a(".Lloop:")
        if st.lst:
            a(f"s_memrealtime {sr(sSTAMP + 2, 2)}")
        a(f"""
        s_cmp_eq_u32 s{sJ}, 8
        s_cbranch_scc1 {Lw0}
        s_cmp_lt_u32 s{sW}, 5
        s_cbranch_scc0 {Lw5}
        s_waitcnt vmcnt(6)
        s_branch {Lwd}
        {Lw5}:
        s_waitcnt vmcnt(5)
        s_branch {Lwd}
        {Lw0}:
        s_waitcnt vmcnt({5 if st.fused else 0})
        {Lwd}:
        {"s_memrealtime " + sr(sSTAMP + 4, 2) if st.lst else ""}
        s_waitcnt lgkmcnt(0)
        s_barrier
        """)
        if st.lst: st.stamp(a, wait=False)
        M = mfmas(B_)
        R = reads(A_, 0)
        for n in range(8):
            a(M[n])
            a(R[2 * n])
            a(R[2 * n + 1])
        a(f"s_cmp_lt_u32 s{sJ}, {0 if 'd' in st.abl else 7}\ns_cbranch_scc0 {Lnd}")
        a.skip_begin()
        soffs()
        for n in range(8, 13):
            a(M[n])
            a("\n".join(dma(n - 8)))
        a.skip_end()
        dma5_inline = True
        L5 = a.label("no5")
        a.skip_begin()
        a(f"s_cmp_lt_u32 s{sW}, 5\ns_cbranch_scc0 {L5}")
        a(f"s_add_u32 m0, s{sSLW}, s{sL5}")
        a(f"buffer_load_dwordx4 v{vD[5]}, {sr(S5, 4)}, s{sO5} offen lds")
        a(f"{L5}:")
        adv_dma()
        a(f"s_branch {Lnd2}")
        a.skip_end()
        a(f"{Lnd}:")
        if st.fused:
            Lj8 = a.label("j8")
            a(f"s_cmp_eq_u32 s{sJ}, 7\ns_cbranch_scc0 {Lj8}")
            a.skip_begin()
            for n in range(8, 13):
                a(M[n])
                st.wo_piece(a, n - 8)
            a(f"s_branch {Lnd2}")
            a.skip_end()
            a(f"{Lj8}:")
            a.skip_begin()
            for n in range(8, 13):
                a(M[n])
                st.wo_piece(a, n - 3)
            st.wo_piece(a, 10)
            a.skip_end()
        else:
            a.skip_begin()
            for n in range(8, 13):
                a(M[n])
            a.skip_end()
        a(f"{Lnd2}:")
        for n in range(13, 16):
            a(M[n])
        extra(B_)
        if st.lst:
            a(f"s_memrealtime {sr(sSTAMP + 6, 2)}")
        a("s_waitcnt lgkmcnt(0)")
        if st.lst:
            a(f"s_add_u32 m0, s{sJ}, 32\ns_nop 0\nv_writelane_b32 v31, s{sSTAMP + 2}, m0")
            a(f"s_add_u32 m0, s{sJ}, 41\ns_nop 0\nv_writelane_b32 v31, s{sSTAMP + 4}, m0")
            a(f"s_add_u32 m0, s{sJ}, 50\ns_nop 0\nv_writelane_b32 v31, s{sSTAMP + 6}, m0")
            a(f"s_add_u32 m0, s{sJ}, 16\ns_nop 0\nv_writelane_b32 v31, s{sSTAMP}, m0")
        M = mfmas(A_)
        R = reads(B_, 1)
        for n in range(8):
            a(M[n])
            a(R[2 * n])
            a(R[2 * n + 1])
        upd = f"""
        s_mov_b32 s{sDW}, {STG}
        s_cmp_eq_u32 s{sRS}, 2
        s_cselect_b32 s{sDW}, {(-2 * STG) & 0xffffffff}, s{sDW}
        s_cselect_b32 s{sRS}, -1, s{sRS}
        s_add_u32 s{sRS}, s{sRS}, 1
        s_movk_i32 s{sDG}, 512
        s_cmp_eq_u32 s{sRST}, 8
        s_cselect_b32 s{sDG}, {(-4096) & 0xffffffff}, s{sDG}
        s_cselect_b32 s{sRST}, -1, s{sRST}
        s_add_u32 s{sRST}, s{sRST}, 1
        s_sub_u32 s{sDG}, s{sDG}, s{sDW}
        v_mul_i32_i24 v{vDl}, s{sDG}, v{vIsG}
        v_add_u32 v{vDl}, s{sDW}, v{vDl}
        """.strip().split("\n")
        upd += [f"v_add_u32 v{r}, s{sDW}, v{r}" for r in vXA + vXL + vXH + [vWA, vWQ]]
        upd += [f"v_add_u32 v{r}, v{vDl}, v{r}" for r in vWV]
        per = (len(upd) + 7) // 8
        for n in range(8, 16):
            a(M[n])
            for u in upd[(n - 8) * per:(n - 7) * per]:
                a(u)
        extra(A_)
        a(f"""
        s_add_u32 s{sJ}, s{sJ}, 1
        s_cmp_lt_u32 s{sJ}, 9
        s_cbranch_scc1 .Lloop
        s_waitcnt lgkmcnt(0)
        """)
        st.stamp(a)
        M = mfmas(B_)
        a(M[14])
        a(M[15])
        extra(B_)
        for n in range(0, 6):
            a(M[n])
        pk = lambda d, x: f"v_cvt_pk_bf16_f32 v{d}, v{x}, v{x + 1}"
        T = 32
        a(f"""
        {pk(T, aQL)}
        {pk(T + 1, aQL + 2)}
        {pk(T + 2, aVL)}
        {pk(T + 3, aVL + 2)}
        {pk(T + 4, aE)}
        {pk(T + 5, aE + 2)}
        """)
        a(M[6])
        a(f"ds_write_b64 v{vEW}, {vr(T, 2)}")
        a(M[7])
        a(f"ds_write_b64 v{vEW}, {vr(T + 2, 2)} offset:{EXV - EXQ}")
        a(M[8])
        a(f"ds_write_b64 v{vEWE}, {vr(T + 4, 2)}")
        for n in range(9, 14):
            a(M[n])
        Lg3 = a.label("nogate3")
        sc = " sc1" if st.fused else ""
        if 'y' in st.abl: sc = " sc0 sc1"
        if 'n' in st.abl: sc = " sc1 nt"
        if 'N' in st.abl: sc = " sc0 sc1 nt"
        a(f"s_cmp_eq_u32 s{sHGB}, 0\ns_cbranch_scc0 {Lg3}")
        a.skip_begin()
        a(f"""
        s_mov_b32 s{sM0}, 0x01000100
        s_mov_b32 s{sM0 + 1}, 0x01000100
        s_mov_b64 exec, {sr(sM0, 2)}
        buffer_store_dwordx4 {vr(aVL, 4)}, v{vSG}, {sr(SWS, 4)}, 0 offen{sc}
        s_mov_b64 exec, -1
        """)
        a.skip_end()
        a(f"{Lg3}:")
        Qf = [40 + 4 * t for t in range(4)]
        Kf = {t: 56 + 4 * (t + 1) for t in range(-1, 4)}
        Vp = {t: 216 + 2 * (3 - t) for t in range(-1, 4)}
        VLf = [226 + 4 * t for t in range(4)]
        for t in range(4):
            a(pk(Qf[t], aQ[t]))
            a(pk(Qf[t] + 1, aQ[t] + 2))
        a("s_waitcnt lgkmcnt(0)\ns_barrier")
        for t in range(4):
            a(f"ds_read_b64 {vr(Qf[t] + 2, 2)}, v{vEQ} offset:{(t + 1) * 512}")
        for t in range(-1, 4):
            a(f"ds_read_b64 {vr(Kf[t] + 2, 2)}, v{vEQ} offset:{(t + 1) * 512 + 256}")
        if st.fused:
            for i in range(11, 18):
                st.wo_piece(a, i)
        for t in range(4):
            a(pk(Kf[t], aK[t]))
            a(pk(Kf[t] + 1, aK[t] + 2))
        a(pk(Kf[-1], aKH))
        a(pk(Kf[-1] + 1, aKH + 2))
        a("s_waitcnt lgkmcnt(5)")
        for t in range(4):
            a(f"v_and_b32 v{Qf[t] + 2}, v{mQ}, v{Qf[t] + 2}")
            a(f"v_and_b32 v{Qf[t] + 3}, v{mQ + 1}, v{Qf[t] + 3}")
        a("s_waitcnt lgkmcnt(0)")
        for t in range(4):
            a(f"ds_read_b64 {vr(VLf[t], 2)}, v{vEV[t]} offset:{(t + 1) * 512}")
            a(f"ds_read_b64 {vr(VLf[t] + 2, 2)}, v{vEV[t]} offset:{t * 512}")
        So = [76 + 4 * t for t in range(4)]
        Sp = [92 + 4 * t for t in range(4)]
        mfc = lambda d, x, y, c: f"v_mfma_f32_16x16x32_bf16 {vr(d, 4)}, {vr(x, 4)}, {vr(y, 4)}, {c}"
        for t in range(4):
            a(mfc(So[t], Kf[t], Qf[t], vr(cOwn, 4)))
            a(mfc(Sp[t], Kf[t - 1], Qf[t], vr(cPrev0 if t == 0 else cPrev, 4)))
        for t in range(4):
            a(pk(Vp[t], aV[t]))
            a(pk(Vp[t] + 1, aV[t] + 2))
        a(pk(Vp[-1], aVH))
        a(pk(Vp[-1] + 1, aVH + 2))
        a(f"s_mov_b32 s{sT0}, {SCALE}\ns_mov_b32 s{sT1}, {LOG2E}")
        Pk = [120 + 2 * t for t in range(4)]
        Mx = [128 + t for t in range(4)]
        Bc = [132 + t for t in range(4)]
        T4 = range(4)
        for r in range(4):
            for t in T4:
                a(f"v_max_f32 v{So[t] + r}, v{So[t] + r}, v{Sp[t] + r}")

        def rnd():
            for t in T4:
                a(pk(Pk[t], So[t]))
                a(pk(Pk[t] + 1, So[t] + 2))
            for t in T4:
                a(f"v_lshlrev_b32 v{So[t]}, 16, v{Pk[t]}")
                a(f"v_and_b32 v{So[t] + 1}, 0xffff0000, v{Pk[t]}")
                a(f"v_lshlrev_b32 v{So[t] + 2}, 16, v{Pk[t] + 1}")
                a(f"v_and_b32 v{So[t] + 3}, 0xffff0000, v{Pk[t] + 1}")
        rnd()
        for t in T4:
            for r in range(4):
                a(f"v_mul_f32 v{So[t] + r}, s{sT0}, v{So[t] + r}")
        rnd()
        for t in T4:
            a(f"v_max3_f32 v{Mx[t]}, v{So[t]}, v{So[t] + 1}, v{So[t] + 2}")
        for t in T4:
            a(f"v_max_f32 v{Mx[t]}, v{Mx[t]}, v{So[t] + 3}")

        def reduce_bcast(op, mid):
            a(f"""
            v_permlane16_swap_b32 v{Mx[0]}, v{Mx[1]}
            v_permlane16_swap_b32 v{Mx[2]}, v{Mx[3]}
            {op} v{Mx[0]}, v{Mx[0]}, v{Mx[1]}
            {op} v{Mx[2]}, v{Mx[2]}, v{Mx[3]}
            v_permlane32_swap_b32 v{Mx[0]}, v{Mx[2]}
            {op} v{Bc[0]}, v{Mx[0]}, v{Mx[2]}
            """)
            a(mid)
            a(f"""
            v_mov_b32 v{Bc[2]}, v{Bc[0]}
            v_permlane32_swap_b32 v{Bc[0]}, v{Bc[2]}
            v_mov_b32 v{Bc[1]}, v{Bc[0]}
            v_mov_b32 v{Bc[3]}, v{Bc[2]}
            v_permlane16_swap_b32 v{Bc[0]}, v{Bc[1]}
            v_permlane16_swap_b32 v{Bc[2]}, v{Bc[3]}
            """)
        reduce_bcast("v_max_f32", f"v_mul_f32 v{Bc[0]}, s{sT1}, v{Bc[0]}")
        for t in T4:
            for r in range(4):
                a(f"v_fma_f32 v{So[t] + r}, v{So[t] + r}, s{sT1}, -v{Bc[t]}")
        for t in T4:
            for r in range(4):
                a(f"v_exp_f32 v{So[t] + r}, v{So[t] + r}")
        for t in T4:
            a(f"v_add_f32 v{Mx[t]}, v{So[t]}, v{So[t] + 1}")
            a(f"v_add_f32 v{Sp[t]}, v{So[t] + 2}, v{So[t] + 3}")
        for t in T4:
            a(f"v_add_f32 v{Mx[t]}, v{Mx[t]}, v{Sp[t]}")
        reduce_bcast("v_add_f32", f"v_rcp_f32 v{Bc[0]}, v{Bc[0]}")
        for t in T4:
            for r in range(4):
                a(f"v_mul_f32 v{So[t] + r}, v{So[t] + r}, v{Bc[t]}")
        Pf = Sp
        for t in T4:
            a(pk(Pk[t], So[t]))
            a(pk(Pk[t] + 1, So[t] + 2))
        for t in T4:
            a(f"v_and_b32 v{Pf[t]}, v{mO}, v{Pk[t]}")
            a(f"v_and_b32 v{Pf[t] + 1}, v{mO + 1}, v{Pk[t] + 1}")
            a(f"v_and_b32 v{Pf[t] + 2}, v{mP}, v{Pk[t]}")
            a(f"v_and_b32 v{Pf[t] + 3}, v{mP + 1}, v{Pk[t] + 1}")
        a("s_waitcnt lgkmcnt(0)")
        Om = [136 + 4 * t for t in range(4)]
        Ol = [152 + 4 * t for t in range(4)]
        for t in T4:
            a(mfc(Om[t], Vp[t], Pf[t], "0"))
        for t in T4:
            a(mfc(Ol[t], VLf[t], Pf[t], "0"))
        Op = 168
        for t in T4:
            a(pk(Op + 2 * t, Om[t]))
            a(pk(Op + 2 * t + 1, Om[t] + 2))
        for q in range(2):
            a(f"v_permlane16_swap_b32 v{Op + 4 * q}, v{Op + 4 * q + 2}")
            a(f"v_permlane16_swap_b32 v{Op + 4 * q + 1}, v{Op + 4 * q + 3}")
        a(f"s_mov_b32 s{sT0}, {2 * 18432}")
        a(f"buffer_store_dwordx4 {vr(Op, 4)}, v{vSO}, {sr(SWS, 4)}, 0 offen{sc}")
        a(f"buffer_store_dwordx4 {vr(Op + 4, 4)}, v{vSO}, {sr(SWS, 4)}, s{sT0} offen{sc}")
        a(f"""
        s_mov_b32 s{sM0}, 0xffff0000
        s_mov_b32 s{sM0 + 1}, 0
        s_mov_b32 s{sM0 + 2}, 0
        s_mov_b32 s{sM0 + 3}, 0xffff
        s_mov_b32 s{sM0 + 4}, 0
        s_mov_b32 s{sM0 + 5}, 0xffff0000
        """)
        for t in T4:
            a(pk(176 + t, Ol[t]))
        for t in range(1, 4):
            a(f"v_cndmask_b32 v176, v176, v{176 + t}, {sr(sM0 + 2 * (t - 1), 2)}")
        a(f"buffer_store_dword v176, v{vSL}, {sr(SWS, 4)}, 0 offen{sc}")
        st.stamp(a)

    def phase2_setup(self, a):
        a(f"""
        s_mul_i32 s{sT0}, s{sXCD}, 29
        s_min_u32 s{sT1}, s{sXCD}, 2
        s_add_u32 s{sT0}, s{sT0}, s{sT1}
        s_add_u32 s{sT0}, s{sT0}, s{sIDX}
        s_cmp_lt_u32 s{sXCD}, 2
        s_cselect_b32 s{sT1}, 30, 29
        s_cmp_lt_u32 s{sIDX}, s{sT1}
        s_cbranch_scc0 .Lend
        s_mul_i32 s6, s{sT0}, 57
        s_lshr_b32 s6, s6, 9
        s_mul_i32 s{sT1}, s6, 9
        s_sub_u32 s7, s{sT0}, s{sT1}
        s_and_b32 s4, s{sW}, 3
        s_lshr_b32 s5, s{sW}, 2
        """)

    def phase2(self, a):
        st = self
        sKQ, sNH, sGRP, sCT = 4, 5, 6, 7
        assert all((t * 57) >> 9 == t // 9 for t in range(234))
        sc = " sc1" if st.fused else ""
        a(f"""
        s_waitcnt lgkmcnt(0)
        s_cmp_eq_u32 s{sNH}, 1
        s_cselect_b32 s{SWO}, s{pBO}, s{pAO}
        s_cselect_b32 s{SWO + 1}, s{pBO + 1}, s{pAO + 1}
        s_and_b32 s{SWO + 1}, s{SWO + 1}, 0xffff
        s_mov_b32 s{SWO + 2}, {576 * 1152}
        s_mov_b32 s{SWO + 3}, 0x20000
        v_lshrrev_b32 v2, 3, v1
        v_and_b32 v3, 7, v1
        ; sw = ((j>>1)&1) | ((g'&1)<<1)
        v_bfe_u32 v4, v2, 1, 1
        s_and_b32 s{sT0}, s{sKQ}, 1
        s_lshl_b32 s{sT1}, s{sT0}, 1
        v_or_b32 v4, s{sT1}, v4
        v_lshrrev_b32 v5, 1, v3
        v_xor_b32 v5, v5, v4
        v_and_b32 v6, 1, v3
        v_lshlrev_b32 v6, 4, v6
        v_lshl_add_u32 v6, v5, 5, v6
        s_lshl_b32 s{sT1}, s{sCT}, 7
        v_add_u32 v6, s{sT1}, v6
        s_lshr_b32 s{sT1}, s{sKQ}, 1
        s_mul_i32 s{sT1}, s{sT1}, 20
        s_lshl_b32 s{sT0}, s{sT0}, 3
        s_add_u32 s{sT1}, s{sT1}, s{sT0}
        v_add_u32 v7, s{sT1}, v2
        v_mul_u32_u24 v7, 1152, v7
        v_add_u32 v10, v7, v6
        v_lshrrev_b32 v7, 1, v2
        v_mul_u32_u24 v8, 18, v7
        v_and_b32 v7, 1, v7
        v_xor_b32 v7, 1, v7
        v_lshl_add_u32 v8, v7, 4, v8
        v_and_b32 v7, 1, v2
        v_add_u32 v8, v8, v7
        s_mul_i32 s{sT1}, s{sKQ}, 72
        v_add_u32 v8, s{sT1}, v8
        v_mul_u32_u24 v8, 1152, v8
        v_add_u32 v11, v8, v6
        s_mul_i32 s{sT2}, s{sNH}, 73728
        s_lshl_b32 s{sT0}, s{sKQ}, 10
        s_add_u32 s{sT2}, s{sT2}, s{sT0}
        """)
        for ks in range(18):
            so = ks * 36 * 1152 if ks < 16 else (ks - 16) * 288 * 1152
            a(f"s_add_u32 m0, s{sT2}, {ks * 4096}")
            a(f"s_mov_b32 s{sT0}, {so}")
            a(f"buffer_load_dwordx4 v{10 if ks < 16 else 11}, {sr(SWO, 4)}, s{sT0} offen lds")
        st.phase2_main(a)

    def phase2_main(self, a):
        st = self
        sKQ, sNH, sGRP, sCT = 4, 5, 6, 7
        sc = ""
        OF = 64
        ACC = 172
        WF = [220, 228, 236, 244]
        vA = [12, 13, 14, 15]
        vG = [16, 17, 18]
        a(f"""
        s_mov_b32 s{SWS}, s{pWS}
        s_and_b32 s{SWS + 1}, s{pWS + 1}, 0xffff
        s_mov_b32 s{SWS + 2}, {GATE_WS + 8192}
        s_mov_b32 s{SWS + 3}, 0x20000
        v_lshlrev_b32 v20, 4, v1
        s_mul_i32 s8, s{sGRP}, 5
        s_mul_i32 s{sT0}, s{sNH}, 3
        s_add_u32 s8, s8, s{sT0}
        s_lshr_b32 s{sT0}, s{sKQ}, 1
        s_mul_i32 s{sT0}, s{sT0}, {OBR}
        s_and_b32 s{sT1}, s{sKQ}, 1
        s_mul_i32 s{sT1}, s{sT1}, 9216
        s_add_u32 s9, s{sT0}, s{sT1}
        """)
        st.p2_wait(a)
        Lsk = a.label("n2")
        for n in range(3):
            a(f"""
            s_add_u32 s{12 + n}, s8, {n}
            s_min_u32 s{12 + n}, s{12 + n}, 127
            s_mul_i32 s{56 + n}, s{12 + n}, 18432
            s_add_u32 s{56 + n}, s{56 + n}, s9
            s_add_u32 s{59 + n}, s{56 + n}, 4096
            s_add_u32 s{62 - 0 + n + 6}, s{56 + n}, 8192
            """)
        so = lambda n, ks: f"s{[56, 59, 68][ks // 4] + n}"
        for ks in range(9):
            for n in range(2):
                a(f"buffer_load_dwordx4 {vr(OF + (n * 9 + ks) * 4, 4)}, v20, {sr(SWS, 4)}, {so(n, ks)} offen offset:{(ks % 4) * 1024}{sc}")
        a(f"s_cmp_eq_u32 s{sNH}, 0\ns_cbranch_scc0 {Lsk}")
        a.skip_begin()
        for ks in range(9):
            a(f"buffer_load_dwordx4 {vr(OF + (18 + ks) * 4, 4)}, v20, {sr(SWS, 4)}, {so(2, ks)} offen offset:{(ks % 4) * 1024}{sc}")
        a.skip_end()
        a(f"{Lsk}:")
        a(f"v_and_b32 v3, 15, v1\nv_lshrrev_b32 v2, 4, v1\nv_lshlrev_b32 v21, 2, v3")
        for n in range(3):
            a(f"""
            s_lshl_b32 s{sT0}, s{12 + n}, 6
            s_add_u32 s{sT0}, s{sT0}, {GATE_WS}
            buffer_load_dword v{vG[n]}, v21, {sr(SWS, 4)}, s{sT0} offen{sc}
            """)
        a(f"""
        v_bfe_u32 v4, v1, 2, 2
        v_and_b32 v5, 3, v1
        v_lshl_add_u32 v6, v2, 3, v4
        v_lshlrev_b32 v6, 7, v6
        v_lshl_add_u32 v6, v5, 3, v6
        v_lshrrev_b32 v7, 1, v4
        v_and_b32 v8, 1, v2
        v_lshl_or_b32 v7, v8, 1, v7
        v_xor_b32 v7, s{sKQ}, v7
        s_lshr_b32 s{sT0}, s{sKQ}, 1
        s_mul_i32 s{sT0}, s{sT0}, 73728
        s_and_b32 s{sT1}, s{sKQ}, 1
        s_mul_i32 s{sT1}, s{sT1}, 36864
        s_add_u32 s{sT0}, s{sT0}, s{sT1}
        v_add_u32 v6, s{sT0}, v6
        """)
        for u in range(4):
            a(f"v_xor_b32 v8, {u}, v7\nv_lshl_add_u32 v{vA[u]}, v8, 5, v6")
        for r in range(ACC, ACC + 48):
            a(f"v_mov_b32 v{r}, 0")
        if not st.fused:
            La, Lb = a.label("wv"), a.label("wv")
            a(f"""
            s_cmp_eq_u32 s{sNH}, 0
            s_cbranch_scc0 {La}
            s_waitcnt vmcnt(30)
            s_branch {Lb}
            {La}:
            s_waitcnt vmcnt(21)
            {Lb}:
            s_barrier
            """)
        st.stamp(a)
        Lp1, Lpd = a.label("p2b"), a.label("p2d")
        a(f"s_cmp_eq_u32 s{sNH}, 0\ns_cbranch_scc0 {Lp1}")
        for nn in (3, 2):
            if nn == 2:
                a(f"{Lp1}:")
            WB = lambda ks, u: 220 + ((ks & 1) * 4 + u) * 4
            def rd(ks):
                return [f"ds_read_b64_tr_b16 {vr(WB(ks, u) + 2 * jj, 2)}, v{vA[u]} offset:{ks * 4096 + jj * 512}"
                        for u in range(4) for jj in range(2)]
            for x in rd(0):
                a(x)
            for ks in range(9):
                if ks < 8:
                    for x in rd(ks + 1):
                        a(x)
                    a("s_waitcnt lgkmcnt(8)")
                else:
                    a("s_waitcnt lgkmcnt(0)")
                for n in range(nn):
                    if n < 2:
                        pos = ks * 2 + n
                    else:
                        pos = 18 + ks
                    tot = (27 if nn == 3 else 18) + 3
                    a(f"s_waitcnt vmcnt({tot - 1 - pos})")
                    for u in range(4):
                        d = ACC + (n * 4 + u) * 4
                        a(f"v_mfma_f32_16x16x32_bf16 {vr(d, 4)}, {vr(WB(ks, u), 4)}, {vr(OF + (n * 9 + ks) * 4, 4)}, {vr(d, 4)}")
            if nn == 3:
                a(f"s_branch {Lpd}")
        a(f"{Lpd}:")
        st.stamp(a)
        a(f"""
        s_nop 7
        s_barrier
        s_mul_i32 s{sT0}, s{sNH}, {3 * 16384}
        s_lshl_b32 s{sT1}, s{sKQ}, 12
        s_add_u32 s{sT1}, s{sT1}, s{sT0}
        """)
        for u in range(1, 4):
            a(f"""
            s_xor_b32 s{sT2}, s{sKQ}, {u}
            s_lshl_b32 s{60 + u}, s{sT2}, 10
            s_add_u32 s{60 + u}, s{60 + u}, s{sT1}
            v_add_u32 v{23 + u}, s{60 + u}, v20
            s_lshl_b32 s{sT2}, s{sT2}, 12
            s_add_u32 s{sT2}, s{sT2}, s{sT0}
            s_lshl_b32 s{70 + u}, s{sKQ}, 10
            s_add_u32 s{sT2}, s{sT2}, s{70 + u}
            v_add_u32 v{27 + u}, s{sT2}, v20
            """)
        L3 = a.label("x3")
        for n in range(3):
            if n == 2:
                a(f"s_cmp_eq_u32 s{sNH}, 0\ns_cbranch_scc0 {L3}")
                a.skip_begin()
            for u in range(1, 4):
                a(f"ds_write_b128 v{23 + u}, {vr(ACC + (n * 4 + u) * 4, 4)} offset:{n * 16384}")
            if n == 2:
                a.skip_end()
                a(f"{L3}:")
        a("s_waitcnt vmcnt(0)")
        a(f"s_mov_b32 s{sT2}, {LOG2E}")
        a(f"s_cmp_lt_u32 s{sKQ}, 2\ns_cselect_b64 vcc, -1, 0")
        cS, cO = [32, 33, 34], [35, 36, 37]
        for n in range(3):
            g = vG[n]
            a(f"""
            v_cvt_pk_bf16_f32 v{g}, v{g}, v{g}
            v_lshlrev_b32 v{g}, 16, v{g}
            v_mul_f32 v{g}, s{sT2}, v{g}
            v_exp_f32 v{g}, -v{g}
            v_add_f32 v{g}, 1.0, v{g}
            v_rcp_f32 v{g}, v{g}
            v_cvt_pk_bf16_f32 v{g}, v{g}, v{g}
            v_lshlrev_b32 v{g}, 16, v{g}
            v_sub_f32 v38, 1.0, v{g}
            v_cvt_pk_bf16_f32 v38, v38, v38
            v_lshlrev_b32 v38, 16, v38
            v_cndmask_b32 v{cS[n]}, v38, v{g}, vcc
            v_cndmask_b32 v{cO[n]}, v{g}, v38, vcc
            """)
        a(f"""
        s_mov_b32 s{SOUT}, s{pOUT}
        s_and_b32 s{SOUT + 1}, s{pOUT + 1}, 0xffff
        s_mov_b32 s{SOUT + 2}, {2048 * 1152}
        s_mov_b32 s{SOUT + 3}, 0x20000
        v_mul_u32_u24 v39, 2304, v3
        v_lshl_add_u32 v39, v2, 3, v39
        s_lshl_b32 s{sT0}, s{sCT}, 7
        s_lshl_b32 s{sT1}, s{sKQ}, 5
        s_add_u32 s{sT0}, s{sT0}, s{sT1}
        v_add_u32 v39, s{sT0}, v39
        """)
        for n in range(3):
            a(f"""
            s_add_u32 s{sT2}, s8, {n}
            s_lshr_b32 s{sT0}, s{sT2}, 3
            s_lshl_b32 s{sT0}, s{sT0}, 7
            s_and_b32 s{sT1}, s{sT2}, 3
            s_lshl_b32 s{sT1}, s{sT1}, 5
            s_add_u32 s{sT0}, s{sT0}, s{sT1}
            s_bfe_u32 s{sT1}, s{sT2}, 0x10002
            s_add_u32 s{sT0}, s{sT0}, s{sT1}
            s_mul_i32 s{56 + n}, s{sT0}, 1152
            s_mov_b32 s{12 + n}, s{sT2}
            """)
        a("s_waitcnt lgkmcnt(0)\ns_barrier")
        RB = OF
        L4 = a.label("x4")
        for n in range(3):
            if n == 2:
                a(f"s_cmp_eq_u32 s{sNH}, 0\ns_cbranch_scc0 {L4}")
                a.skip_begin()
            for u in range(1, 4):
                a(f"ds_read_b128 {vr(RB + (n * 4 + u) * 4, 4)}, v{27 + u} offset:{n * 16384}")
            if n == 2:
                a.skip_end()
                a(f"{L4}:")
        a("s_waitcnt lgkmcnt(0)")
        for n in range(3):
            Ln = a.label("fin")
            lim = 128
            if n == 2:
                a(f"s_cmp_eq_u32 s{sNH}, 0\ns_cbranch_scc0 {Ln}")
            a(f"s_cmp_lt_u32 s{12 + n}, 128\ns_cbranch_scc0 {Ln}")
            a.skip_begin()
            own = ACC + n * 16
            r1, r2, r3 = [RB + (n * 4 + u) * 4 for u in (1, 2, 3)]
            for r in range(4):
                a(f"v_add_f32 v{own + r}, v{own + r}, v{r1 + r}")
                a(f"v_add_f32 v{r2 + r}, v{r2 + r}, v{r3 + r}")
            P = 40

            def rnd(base):
                a(f"""
                v_cvt_pk_bf16_f32 v{P}, v{base}, v{base + 1}
                v_cvt_pk_bf16_f32 v{P + 1}, v{base + 2}, v{base + 3}
                v_lshlrev_b32 v{base}, 16, v{P}
                v_and_b32 v{base + 1}, 0xffff0000, v{P}
                v_lshlrev_b32 v{base + 2}, 16, v{P + 1}
                v_and_b32 v{base + 3}, 0xffff0000, v{P + 1}
                """)
            rnd(own)
            rnd(r2)
            for r in range(4):
                a(f"v_mul_f32 v{own + r}, v{own + r}, v{cS[n]}")
                a(f"v_mul_f32 v{r2 + r}, v{r2 + r}, v{cO[n]}")
            rnd(own)
            rnd(r2)
            for r in range(4):
                a(f"v_add_f32 v{own + r}, v{own + r}, v{r2 + r}")
            a(f"""
            v_cvt_pk_bf16_f32 v{44 + 2 * n}, v{own}, v{own + 1}
            v_cvt_pk_bf16_f32 v{45 + 2 * n}, v{own + 2}, v{own + 3}
            buffer_store_dwordx2 {vr(44 + 2 * n, 2)}, v39, {sr(SOUT, 4)}, s{56 + n} offen
            """)
            a.skip_end()
            a(f"{Ln}:")
        st.stamp(a)

    def p2_tile(self, a, sg, sc_):
        a(f"""
        s_mul_i32 s{sT0}, s{sXCD}, 29
        s_min_u32 s{sT1}, s{sXCD}, 2
        s_add_u32 s{sT0}, s{sT0}, s{sT1}
        s_add_u32 s{sT0}, s{sT0}, s{sIDX}
        s_mul_i32 s{sg}, s{sT0}, 57
        s_lshr_b32 s{sg}, s{sg}, 9
        s_mul_i32 s{sT1}, s{sg}, 9
        s_sub_u32 s{sc_}, s{sT0}, s{sT1}
        s_cmp_lt_u32 s{sXCD}, 2
        s_cselect_b32 s{sT1}, 30, 29
        s_cmp_lt_u32 s{sIDX}, s{sT1}
        """)

    def wo_setup(self, a):
        sKQ, sNH = sH, sP
        self.p2_tile(a, sGRP2, sCT2)
        a(f"""
        s_mov_b32 s{SWO}, s{pAO}
        s_and_b32 s{SWO + 1}, s{pAO + 1}, 0xffff
        s_mov_b32 s{SWO + 2}, {576 * 1152}
        s_mov_b32 s{SWO + 3}, 0x20000
        s_mov_b32 s{SWO2}, s{pBO}
        s_and_b32 s{SWO2 + 1}, s{pBO + 1}, 0xffff
        s_mov_b32 s{SWO2 + 2}, {576 * 1152}
        s_mov_b32 s{SWO2 + 3}, 0x20000
        s_lshl_b32 s{sWL}, s{sW}, 10
        v_lshrrev_b32 v216, 3, v1
        v_and_b32 v217, 7, v1
        v_bfe_u32 v4, v216, 1, 1
        s_and_b32 s{sT0}, s{sKQ}, 1
        s_lshl_b32 s{sT1}, s{sT0}, 1
        v_or_b32 v4, s{sT1}, v4
        v_lshrrev_b32 v5, 1, v217
        v_xor_b32 v5, v5, v4
        v_and_b32 v6, 1, v217
        v_lshlrev_b32 v6, 4, v6
        v_lshl_add_u32 v6, v5, 5, v6
        s_lshl_b32 s{sT1}, s{sCT2}, 7
        v_add_u32 v6, s{sT1}, v6
        s_lshr_b32 s{sT1}, s{sKQ}, 1
        s_mul_i32 s{sT1}, s{sT1}, 20
        s_lshl_b32 s{sT0}, s{sT0}, 3
        s_add_u32 s{sT1}, s{sT1}, s{sT0}
        s_mul_i32 s{sT0}, s{sNH}, 36
        s_add_u32 s{sT1}, s{sT1}, s{sT0}
        v_add_u32 v7, s{sT1}, v216
        v_mul_u32_u24 v7, 1152, v7
        v_add_u32 v242, v7, v6
        v_lshrrev_b32 v7, 1, v216
        v_mul_u32_u24 v8, 18, v7
        v_and_b32 v7, 1, v7
        v_xor_b32 v7, 1, v7
        v_lshl_add_u32 v8, v7, 4, v8
        v_and_b32 v7, 1, v216
        v_add_u32 v8, v8, v7
        s_mul_i32 s{sT1}, s{sW}, 72
        v_add_u32 v8, s{sT1}, v8
        v_mul_u32_u24 v8, 1152, v8
        v_add_u32 v243, v8, v6
        """)

    def wo_piece(self, a, i):
        br, k = divmod(i, 9)
        srd = sr(SWO2 if br else SWO, 4)
        a(f"s_add_u32 m0, s{sWL}, {br * 73728 + k * 8192}")
        if k == 8:
            a(f"buffer_load_dwordx4 v243, {srd}, 0 offen lds")
        elif k == 0:
            a(f"buffer_load_dwordx4 v242, {srd}, 0 offen lds")
        else:
            a(f"s_mov_b32 s{sWT}, {k * 82944}")
            a(f"buffer_load_dwordx4 v242, {srd}, s{sWT} offen lds")

    def p1_signal(self, a):
        L = a.label("nofl")
        F = 'F' in self.abl
        if F:
            a(f"""
            s_lshl_b32 s{sT0}, s{sRT}, 8
            s_lshl_b32 s{sT1}, s{sHGB}, 2
            s_add_u32 s{sT0}, s{sT0}, s{sT1}
            s_add_u32 s{sT0}, s{sT0}, {FLAG_WS}
            """)
        else:
            a(f"""
            s_lshl_b32 s{sT0}, s{sRT}, 4
            s_add_u32 s{sT0}, s{sT0}, s{sHGB}
            """)
        a(f"""
        v_mov_b32 v2, s{sT0}
        v_mov_b32 v3, 1
        s_waitcnt vmcnt(0)
        s_barrier
        s_cmp_eq_u32 s{sW}, 0
        s_cbranch_scc0 {L}
        """)
        a.skip_begin()
        fsc = "sc1" if 'g' in self.abl else "sc0 sc1"
        a(f"""
        s_mov_b64 exec, 1
        {"global_store_dword v2, v3, " + sr(pWS, 2) if F else "global_store_byte v2, v3, " + sr(pDBG, 2)} {fsc}
        s_mov_b64 exec, -1
        """)
        a.skip_end()
        a(f"{L}:")

    def p2_wait(self, a):
        if not self.fused:
            return
        L, Lp, Ld = a.label("np"), a.label("poll"), a.label("pd")
        F = 'F' in self.abl
        fsc = "sc1" if 'g' in self.abl else "sc0 sc1"
        a(f"""
        s_cmp_eq_u32 s{sW}, 0
        s_cbranch_scc0 {L}
        """)
        a.skip_begin()
        a(f"""
        s_mul_i32 s{sT0}, s6, 5
        s_add_u32 s{sT1}, s{sT0}, 4
        s_min_u32 s{sT1}, s{sT1}, 127
        s_lshr_b32 s{sT0}, s{sT0}, 3
        s_lshr_b32 s{sT1}, s{sT1}, 3
        s_lshl_b32 s{sT0}, s{sT0}, {8 if F else 4}
        s_lshl_b32 s{sT1}, s{sT1}, {8 if F else 4}
        v_and_b32 v40, {15 if F else 3}, v1
        v_lshlrev_b32 v40, 2, v40
        v_mov_b32 v41, s{sT0}
        v_mov_b32 v42, s{sT1}
        v_cmp_gt_u32 vcc, {16 if F else 4}, v1
        v_cndmask_b32 v41, v42, v41, vcc
        v_add_u32 v40, v40, v41
        {"v_add_u32 v40, " + str(FLAG_WS) + ", v40" if F else ""}
        s_mov_b32 s{sT2}, 0
        s_mov_b64 exec, {"0xffffffff" if F else "0xff"}
        {Lp}:
        global_load_dword v41, v40, {sr(pWS if F else pDBG, 2)} {fsc}
        s_add_u32 s{sT2}, s{sT2}, 1
        s_waitcnt vmcnt(0)
        v_cmp_ne_u32 vcc, {"1" if F else "0x01010101"}, v41
        s_cmp_eq_u64 vcc, 0
        s_cbranch_scc1 {Ld}
        {"s_sleep 8" if 'S' in self.abl else ""}
        s_cmp_lt_u32 s{sT2}, 0x4000
        s_cbranch_scc1 {Lp}
        {Ld}:
        s_mov_b64 exec, -1
        {"v_writelane_b32 v31, s" + str(sT2) + ", 24" if self.stamps else ""}
        """)
        a.skip_end()
        a(f"{L}:\ns_barrier")
        self.stamp_nw(a)

    def build(self):
        if not self.fused:
            K1, K2 = "p1_kernel", "p2_kernel"
            a = Asm()
            self.ids(a)
            self.phase1(a)
            self.stamp_store(a, STAMP_WS, 32)
            a(".Lend:\ns_endpgm")
            t1 = a.text()
            b = Asm()
            b.nlab = 1000
            self.nst = 0
            self.ids(b)
            self.phase2_setup(b)
            self.phase2(b)
            self.stamp_store(b, STAMP_WS + (1 << 20), 32)
            b(".Lend:\ns_endpgm")
            t2 = b.text().replace(".Lend", ".Lend2")
            s = header([(K1, 256, 512, LDS_BYTES), (K2, 256, 512, LDS_BYTES)])
            s += kernel_open(K1) + t1 + kernel_open(K2) + t2
            s += '.section .rodata,"a"\n' + kd(K1, 256) + kd(K2, 256)
            sys.stderr.write(f"nops inserted: {a.nops} {b.nops}\n")
            return s
        K = NAME + "_kernel"
        a = Asm()
        self.ids(a)
        self.phase1(a)
        self.p1_signal(a)
        self.stamp(a)
        self.p2_tile(a, 6, 7)
        Lt = a.label("tile")
        a(f"s_cbranch_scc1 {Lt}")
        self.stamp_store(a, STAMP_WS, 32)
        a(f"s_endpgm\n{Lt}:")
        a(f"v_and_b32 v1, 63, v0")
        self.phase2_main(a)
        self.stamp_store(a, STAMP_WS, 32)
        a(".Lend:\ns_endpgm")
        s = header([(K, 256, 512, LDS_BYTES)])
        s += kernel_open(K) + a.text()
        s += '.section .rodata,"a"\n' + kd(K, 256)
        sys.stderr.write(f"nops inserted: {a.nops}\n")
        return s


if __name__ == "__main__":
    import argparse
    ap = argparse.ArgumentParser()
    ap.add_argument("-o", default="k2.s")
    ap.add_argument("--fused", action="store_true")
    ap.add_argument("--stamps", action="store_true")
    ap.add_argument("--abl", default="")
    x = ap.parse_args()
    open(x.o, "w").write(Gen(fused=x.fused, stamps=x.stamps, abl=x.abl).build())
```

```python
import re
NAME = "gated_mix__sliding_local_dilated__sliding_local_dilated__prompt"

TRANS = ("v_exp_f32", "v_log_f32", "v_rcp_f32", "v_rsq_f32", "v_sqrt_f32", "v_sin_f32", "v_cos_f32")


def regs_of(op):
    op = op.strip()
    op = op.lstrip("-")
    m = re.match(r"^abs\((.*)\)$", op) or re.match(r"^\|(.*)\|$", op)
    if m:
        op = m.group(1)
    m = re.match(r"^([vsa])(\d+)$", op)
    if m:
        return {(m.group(1), int(m.group(2)))}
    m = re.match(r"^([vsa])\[(\d+):(\d+)\]$", op)
    if m:
        return {(m.group(1), i) for i in range(int(m.group(2)), int(m.group(3)) + 1)}
    if op in ("vcc", "vcc_lo", "vcc_hi"):
        return {("vcc", 0)}
    if op == "m0":
        return {("m0", 0)}
    if op in ("exec", "exec_lo", "exec_hi"):
        return {("exec", 0)}
    return set()


class Ins:
    __slots__ = ("text", "mn", "ops", "kind", "defs", "uses", "a", "b", "c", "region", "ws", "lds", "wide", "data")

    def __init__(self, text, region):
        self.text = text
        self.region = region
        t = text.split(";")[0].strip()
        parts = t.split(None, 1)
        self.mn = parts[0]
        rest = parts[1] if len(parts) > 1 else ""
        ops = []
        depth = 0
        cur = ""
        for ch in rest:
            if ch == "[":
                depth += 1
            if ch == "]":
                depth -= 1
            if ch == "," and depth == 0:
                ops.append(cur.strip())
                cur = ""
            else:
                cur += ch
        if cur.strip():
            ops.append(cur.strip())
        mods = []
        if ops:
            sp = ops[-1].split()
            ops[-1] = sp[0]
            mods = sp[1:]
        self.ops = ops
        mn = self.mn
        self.defs = set()
        self.uses = set()
        self.a = self.b = self.c = set()
        self.lds = False
        self.wide = False
        self.data = set()
        self.ws = 1
        R = [regs_of(o) for o in ops]
        if mn == "s_nop":
            self.kind = "nop"
            self.ws = int(ops[0], 0) + 1
        elif mn.startswith("v_mfma"):
            self.kind = "mfma"
            self.defs = R[0]
            self.a, self.b, self.c = R[1], R[2], R[3]
            self.uses = R[1] | R[2] | R[3]
        elif mn.startswith("v_"):
            self.kind = "valu"
            if mn.startswith("v_permlane") and "swap" in mn:
                self.defs = R[0] | R[1]
                self.uses = R[0] | R[1]
            elif mn.startswith(("v_add_co", "v_sub_co", "v_addc", "v_subb", "v_subrev_co")):
                self.defs = R[0] | R[1]
                for r in R[2:]:
                    self.uses |= r
            else:
                self.defs = R[0]
                for r in R[1:]:
                    self.uses |= r
                if mn.startswith(("v_fmac", "v_mac")):
                    self.uses |= R[0]
                if mn.startswith("v_cndmask") and len(ops) == 3:
                    self.uses |= {("vcc", 0)}
        elif mn.startswith("ds_"):
            self.kind = "ds"
            if mn.startswith(("ds_read", "ds_bpermute", "ds_permute", "ds_swizzle")):
                self.defs = R[0]
                for r in R[1:]:
                    self.uses |= r
            else:
                for r in R:
                    self.uses |= r
        elif mn.startswith(("buffer_", "global_")):
            self.kind = "vmem"
            self.lds = "lds" in mods
            isload = "_load" in mn
            if isload and not self.lds:
                self.defs = R[0]
                for r in R[1:]:
                    self.uses |= r
            else:
                for r in R:
                    self.uses |= r
            if "_store" in mn:
                if mn.startswith("buffer_"):
                    self.data = R[0]
                else:
                    self.data = R[1]
                self.wide = mn.endswith(("x3", "x4"))
        elif mn.startswith("s_"):
            self.kind = "salu"
            if mn.startswith(("s_cmp", "s_cbranch", "s_branch", "s_waitcnt", "s_barrier", "s_endpgm", "s_sleep",
                              "s_setprio", "s_bitcmp")):
                for r in R:
                    self.uses |= r
            else:
                self.defs = R[0] if R else set()
                for r in R[1:]:
                    self.uses |= r
                if "saveexec" in mn:
                    self.defs = self.defs | {("exec", 0)}
        else:
            raise ValueError("unknown instr " + text)


def need(p, c):
    n = 0
    vd = {r for r in p.defs if r[0] in ("v", "a")}
    sd = {r for r in p.defs if r[0] in ("s", "vcc")}
    if p.kind == "valu":
        if c.kind == "mfma" and vd & c.uses:
            n = max(n, 2)
        if c.kind == "valu":
            if c.mn.startswith("v_permlane") and vd & c.uses:
                n = max(n, 2)
            if ("dpp" in c.text or "row_" in c.text or "quad_perm" in c.text) and vd & c.uses:
                n = max(n, 2)
            if c.mn.startswith(("v_readfirstlane", "v_readlane")) and vd & c.uses:
                n = max(n, 1)
            if sd & c.uses:
                n = max(n, 4 if c.mn.startswith(("v_readlane", "v_writelane")) else 2)
            if p.mn in TRANS and vd & c.uses:
                n = max(n, 1)
            if ("sdwa" in p.mn or "op_sel" in p.text) and vd & (c.uses | c.defs):
                n = max(n, 1)
            if p.mn.startswith("v_dot") and vd & (c.uses | c.defs):
                n = max(n, 3)
        if c.kind == "vmem" and sd & c.uses:
            n = max(n, 5)
        if c.kind == "salu" and sd & c.uses:
            n = max(n, 1)
        if ("exec", 0) in p.defs:
            n = max(n, 5)
        if p.mn.startswith("v_dot") and c.kind != "valu" and vd & c.uses:
            n = max(n, 3)
    if p.kind == "mfma":
        big = "32x32" in p.mn
        far = 12 if big else 8
        if c.kind == "mfma":
            if vd & (c.a | c.b):
                n = max(n, far)
            if vd & c.c and c.c != p.defs:
                n = max(n, 10 if big else 6)
            if vd & c.defs and c.c != p.defs:
                n = max(n, far)
        elif c.kind in ("valu", "ds", "vmem"):
            if vd & (c.uses | c.defs):
                n = max(n, far)
        if c.kind == "valu" and p.c & c.defs:
            n = max(n, 7 if big else 3)
        if c.kind in ("ds", "vmem") and p.c & c.defs:
            n = max(n, 7 if big else 3)
    if p.kind == "salu":
        if ("m0", 0) in p.defs and c.kind == "vmem" and c.lds:
            n = max(n, 1)
    if p.kind == "vmem" and p.wide:
        if p.data & c.defs:
            n = max(n, 2)
    return n


class Asm:
    def __init__(self):
        self.items = []
        self.nlab = 0
        self.region = 0
        self.nreg = 0
        self.nops = 0

    def label(self, base="L"):
        self.nlab += 1
        return f".{base}_{self.nlab}"

    def skip_begin(self):
        self.nreg += 1
        self.region = self.nreg

    def skip_end(self):
        self.region = 0

    def raw(self, s):
        self.items.append(s)

    def __call__(self, s):
        for l in s.strip("\n").split("\n"):
            l = l.strip()
            if not l or l.startswith(";"):
                continue
            if l.split(";")[0].strip().endswith(":") or l.startswith("."):
                self.items.append(l)
                continue
            self.emit(l)

    def emit(self, l):
        c = Ins(l, self.region)
        dist = 0
        req = 0
        for it in reversed(self.items):
            if isinstance(it, str):
                continue
            if dist >= 14:
                break
            n = need(it, c)
            if n > dist:
                req = max(req, n - dist)
            if it.region == 0 or it.region == c.region:
                dist += it.ws
        if req > 0:
            self.nops += 1
            self.items.append(Ins(f"s_nop {req - 1}", self.region))
        self.items.append(c)

    def text(self):
        out = []
        for it in self.items:
            if isinstance(it, str):
                out.append(it)
            else:
                out.append("    " + it.text)
        return "\n".join(out) + "\n"


def header(launches):
    s = "; gated dual sliding-window attention + output projection (hand-written generator output)\n"
    if len(launches) == 1 and launches[0][0] == NAME + "_kernel":
        k, g, b, l = launches[0]
        s += f"; @launch grid=({g},1,1) block=({b},1,1) lds={l}\n"
    else:
        for k, g, b, l in launches:
            s += f"; @launch kernel={k} grid=({g},1,1) block=({b},1,1) lds={l}\n"
    s += '.amdgcn_target "amdgcn-amd-amdhsa--gfx950"\n.text\n'
    return s


def kernel_open(name):
    return f".globl {name}\n.p2align 8\n.type {name},@function\n{name}:\n"


def kd(name, nvgpr, nsgpr=102, accum=None):
    if accum is None:
        accum = (nvgpr + 3) // 4 * 4
    return f""".p2align 6
.amdhsa_kernel {name}
  .amdhsa_next_free_vgpr {nvgpr}
  .amdhsa_next_free_sgpr {nsgpr}
  .amdhsa_accum_offset {accum}
  .amdhsa_group_segment_fixed_size 0
  .amdhsa_kernarg_size 80
  .amdhsa_user_sgpr_count 2
  .amdhsa_user_sgpr_kernarg_segment_ptr 1
  .amdhsa_system_sgpr_workgroup_id_x 1
  .amdhsa_float_denorm_mode_32 3
  .amdhsa_float_denorm_mode_16_64 3
.end_amdhsa_kernel
"""


def magic(d, maxn):
    for sh in range(8, 31):
        m = -(-(1 << sh) // d)
        if m >= (1 << 24) or m * maxn >= (1 << 32):
            break
        if all((n * m) >> sh == n // d for n in range(maxn + 1)):
            return m, sh
    raise ValueError


def vr(b, n=1):
    return f"v{b}" if n == 1 else f"v[{b}:{b + n - 1}]"


def ar(b, n=1):
    return f"a{b}" if n == 1 else f"a[{b}:{b + n - 1}]"


def sr(b, n=1):
    return f"s{b}" if n == 1 else f"s[{b}:{b + n - 1}]"
```

```python
import sys, struct
from asm2 import *

XS = 18432
WB = 55296
WS_ = 27648
GOFF = 138240
EXQ = 147456
EXV = EXQ + 5120
EXZ = EXQ + 10240
EXD = EXZ + 64
EXF = 138240
LDS_BYTES = 163840
BLK = 4608
OBR = 128 * 18432
GATE_WS = 2 * OBR
CNT_WS = GATE_WS + 8192
STAMP_WS = 8 << 20
NEG = 0xf149f2ca
SCALE = struct.unpack("<I", struct.pack("<f", 18 ** -0.5))[0]
LOG2E = 0x3fb8aa3b

sW, sG, sIDX, sRT, sHGB, sBR, sHG, sXCC, sST, sVAL, sFAST, sST0, sCG = 3, 4, 5, 6, 7, 8, 9, 10, 11, 12, 13, 14, 15
KA = 16
pAX, pAW, pAO, pBX, pBW, pBO, pGW, pOUT, pDBG, pWS = [KA + 2 * i for i in range(10)]
SX, SW, S10, SWS, SAO, SBO, SOUT = 36, 40, 44, 48, 52, 56, 60
sOX, sOW, sO10, sWL = 64, 65, 66, 67
sL10 = [68, 69, 70]
sW256, sT0, sT1, sT2, sT3, sU0, sU1 = 71, 72, 73, 74, 75, 76, 77
sM0 = 78
sSTAMP = 84
sP0 = 100
sDONE = 101


def atoms(txt):
    out = []
    for l in txt.strip("\n").split("\n"):
        l = l.strip()
        if not l or l.startswith(";"):
            continue
        if l.startswith(("s_cselect", "s_cbranch_scc", "s_addc", "s_subb")):
            grp = [l]
            while True:
                p = out.pop()
                grp.insert(0, p)
                if p.startswith(("s_cmp", "s_bitcmp")):
                    break
            out.append("\n".join(grp))
        else:
            out.append(l)
    return out


class Gen:
    def __init__(self, stamps=False, abl="", opt=None):
        self.stamps = stamps
        self.abl = abl
        self.opt = dict(rspan=24, dma0=2, dspan=44, rota=1, rotb=1, pre=12, nchunk=3, pp=0, fillmax=3, h1=24,
                        x1c=1)
        if opt:
            self.opt.update(opt)
        self.nst = 0
        self.pend = []
        self.nnw = 0

    def stamp(self, a):
        if self.stamps:
            a(f"s_memrealtime {sr(sSTAMP, 2)}")
            a(f"s_memtime {sr(sSTAMP + 8, 2)}")
            a("s_waitcnt lgkmcnt(0)")
            a(f"v_writelane_b32 v31, s{sSTAMP}, {self.nst}")
            a(f"v_writelane_b32 v31, s{sSTAMP + 8}, {self.nst + 12}")
            self.nst += 1
            assert self.nst <= 12
            for lane, sp in self.pend:
                a(f"v_writelane_b32 v31, s{sp}, {lane}")
            self.pend = []

    def stamp_nw(self, a):
        if self.stamps:
            sp = sSTAMP + 10 + 2 * len(self.pend)
            assert len(self.pend) < 3
            a(f"s_memrealtime {sr(sp, 2)}")
            self.pend.append((25 + self.nnw, sp))
            self.nnw += 1

    def stamp_store(self, a, tmpv):
        if not self.stamps:
            return
        a(f"s_lshl_b32 s{sT0}, s2, 11\ns_add_u32 s{sT0}, s{sT0}, {STAMP_WS}")
        a(f"v_lshlrev_b32 v{tmpv}, 2, v0\nv_add_u32 v{tmpv}, s{sT0}, v{tmpv}")
        a(f"global_store_dword v{tmpv}, v31, {sr(pWS, 2)}")

    def build(self):
        st = self
        opt = self.opt
        a = Asm()
        vD = list(range(10, 22))
        vP1 = list(range(22, 30))
        vGT = 30
        vP2 = [32, 33, 34, 35]
        vXA = [[36, 37], [38, 39]]
        vXH = [40, 41]
        vWA = [42, 43]
        vWL = [44, 45, 46, 47]
        vdA, vdB = 48, 49
        cOwn, cPrev = 50, 54
        cH = [58, 62]
        mO, mP = 66, 68
        vEW = 70
        vEQ = [71, 72]
        vEK = [73, 74]
        vEV = [[75 + 4 * q + t for t in range(4)] for q in range(2)]
        vSO, vSL = [83, 84], [85, 86]
        vSG, vDEC, vFA, vGT2 = 87, 88, 89, 90
        vPUB, vONE = 91, 92
        vFB = [93, 94]
        vP3 = 95
        aQ = [96 + 4 * s for s in range(8)]
        aK = [128 + 4 * s for s in range(8)]
        aV = [160 + 4 * s for s in range(8)]
        aKH, aVH = 192, 196
        aL = [200 + 4 * t for t in range(4)]
        aLH = 216
        fr = lambda b: dict(X=[b + 4 * s for s in range(8)], XH=b + 32, WQ=b + 36, WK=b + 40, WV=b + 44, WL=b + 48)
        A_, B_ = fr(0), fr(52)
        m27, s27 = magic(27, 2047)
        m9, s9 = magic(9, 2047)
        T = 220
        PL = ["global_load_dword {d}, {a}, {b} sc1", "global_load_dword {d}, {a}, {b} nt",
              "global_atomic_add {d}, {a}, {z}, {b} sc0", "global_load_dword {d}, {a}, {b} sc0 sc1",
              "global_load_dword {d}, {a}, {b} sc0 nt"][opt['pp']]

        ACT = f"s_and_b32 s4, s2, {opt['act']}\ns_cbranch_scc1 .Lend" if 'act' in opt else ""
        a(f"""
        s_cmp_ge_u32 s2, 256
        s_cbranch_scc1 .Lend
        {ACT}
        s_load_dwordx16 {sr(KA, 16)}, s[0:1], 0
        s_load_dwordx4 {sr(KA + 16, 4)}, s[0:1], 64
        """)
        st.stamp(a)
        a(f"""
        v_lshrrev_b32 v2, 6, v0
        v_and_b32 v1, 63, v0
        v_readfirstlane_b32 s{sW}, v2
        s_and_b32 s{sG}, s2, 7
        s_lshr_b32 s{sIDX}, s2, 3
        s_lshl_b32 s{sT0}, s{sG}, 1
        s_and_b32 s{sT1}, s{sIDX}, 1
        s_add_u32 s{sRT}, s{sT0}, s{sT1}
        s_lshr_b32 s{sHGB}, s{sIDX}, 1
        s_mul_i32 s{sST}, s{sHGB}, {opt['rota']}
        s_mul_i32 s{sT0}, s{sG}, {opt['rotb']}
        s_add_u32 s{sST}, s{sST}, s{sT0}
        s_mul_i32 s{sT0}, s{sST}, 57
        s_lshr_b32 s{sT0}, s{sT0}, 9
        s_mul_i32 s{sT0}, s{sT0}, 9
        s_sub_u32 s{sST}, s{sST}, s{sT0}
        s_mov_b32 s{sST0}, s{sST}
        s_lshr_b32 s{sBR}, s{sHGB}, 3
        s_and_b32 s{sHG}, s{sHGB}, 7
        v_lshrrev_b32 v3, 3, v1
        v_and_b32 v4, 7, v1
        v_xor_b32 v4, v4, v3
        v_mul_u32_u24 v5, 2304, v3
        v_lshl_add_u32 v5, v4, 4, v5
        s_lshl_b32 s{sT0}, s{sRT}, 7
        s_lshl_b32 s{sT1}, s{sW}, 4
        s_add_u32 s{sT1}, s{sT1}, s{sT0}
        s_mul_i32 s{sT1}, s{sT1}, 1152
        v_add_u32 v{vD[0]}, s{sT1}, v5
        v_add_u32 v{vD[1]}, {64 * 1152}, v{vD[0]}
        v_add_u32 v{vD[2]}, 1152, v{vD[0]}
        v_add_u32 v{vD[3]}, 1152, v{vD[1]}
        s_lshl_b32 s{sWL}, s{sW}, 10
        s_lshl_b32 s{sOX}, s{sST}, 7
        s_mul_i32 s{sOW}, s{sST}, {64 * 3456}
        s_mul_i32 s{sT3}, s{sHG}, 144
        s_lshl_b32 s{sT0}, s{sG}, 9
        s_add_u32 s{sT0}, s{sT0}, {CNT_WS}
        v_lshlrev_b32 v{vFA}, 7, v1
        v_add_u32 v{vFA}, s{sT0}, v{vFA}
        v_mov_b32 v{vONE}, 0
        s_or_b32 s{sU0}, s{sIDX}, s{sW}
        """)
        assert all((t * 57) >> 9 == t // 9 for t in range(15 * opt['rota'] + 7 * opt['rotb'] + 1))

        def waddr(n, out):
            return f"""
            v_mul_u32_u24 v6, {m27}, v{n}
            v_lshrrev_b32 v6, {s27}, v6
            v_mul_u32_u24 v7, 27, v6
            v_sub_u32 v7, v{n}, v7
            v_mul_u32_u24 v8, 57, v7
            v_lshrrev_b32 v8, 9, v8
            v_bfe_u32 v9, v6, 1, 2
            v_and_or_b32 v9, v6, 56, v9
            v_and_b32 v6, 1, v6
            v_lshl_or_b32 v9, v6, 2, v9
            v_mul_u32_u24 v9, 3456, v9
            v_lshl_add_u32 v9, v7, 4, v9
            v_mul_u32_u24 v8, 1008, v8
            v_add3_u32 v{out}, v9, v8, s{sT3}
            """
        a(waddr(0, vD[4]))
        a(f"v_add_u32 v2, 256, v0")
        a(waddr(2, vD[5]))
        Lz = a.label("nolead")
        a(f"""
        s_waitcnt lgkmcnt(0)
        s_mov_b32 s{SX}, s{pAX}
        s_and_b32 s{SX + 1}, s{pAX + 1}, 0xffff
        s_mov_b32 s{SX + 2}, {2048 * 1152}
        s_mov_b32 s{SX + 3}, 0x20000
        s_cmp_eq_u32 s{sU0}, 0
        s_cbranch_scc0 {Lz}
        """)
        a.skip_begin()
        a(f"""
        s_mov_b64 exec, 7
        global_store_dword v{vFA}, v{vONE}, {sr(pWS, 2)}
        s_mov_b64 exec, -1
        """)
        a.skip_end()
        a(f"{Lz}:")

        WP = ["", " nt", " sc1", " sc0", " sc0 sc1", " sc1 nt"][opt.get('wp', 0)]

        def dma(j, u, regs=vD, sx=SX, sw=SW, s10=S10, ox=f"s{sOX}", ow=f"s{sOW}", o10=f"s{sO10}"):
            if j < 4:
                return [f"s_add_u32 m0, s{sWL}, {u * XS + j * 4096}",
                        f"buffer_load_dwordx4 v{regs[j]}, {sr(sx, 4)}, {ox} offen lds"]
            if j < 10:
                return [f"s_add_u32 m0, s{sWL}, {WB + u * WS_ + (j - 4) * 4096}",
                        f"buffer_load_dwordx4 v{regs[j]}, {sr(sw, 4)}, {ow} offen{WP} lds"]
            if j == 10:
                return [f"s_mov_b32 m0, s{sL10[u]}",
                        f"buffer_load_dwordx4 v{regs[j]}, {sr(s10, 4)}, {o10} offen lds"]
            return [f"s_add_u32 m0, s{sW256}, {WB + u * WS_ + 26624}",
                    f"buffer_load_dword v{regs[j]}, {sr(sw, 4)}, {ow} offen lds"]

        hit = 'h' in st.abl
        adv = atoms(f"""
        s_add_u32 s{sOX}, s{sOX}, {0 if hit else 128}
        s_add_u32 s{sOW}, s{sOW}, {0 if hit else 64 * 3456}
        s_add_u32 s{sST}, s{sST}, 1
        s_cmp_eq_u32 s{sST}, 9
        s_cselect_b32 s{sST}, 0, s{sST}
        s_cselect_b32 s{sOX}, 0, s{sOX}
        s_cselect_b32 s{sOW}, 0, s{sOW}
        s_cmp_lt_u32 s{sW}, 2
        s_cselect_b32 s{sO10}, s{sOX}, s{sOW}
        """)

        st.stamp_nw(a)
        d0 = [dma(j, 0) for j in range(12)]
        srdw = f"""
        s_cmp_eq_u32 s{sBR}, 1
        s_cselect_b32 s{SW}, s{pBW}, s{pAW}
        s_cselect_b32 s{SW + 1}, s{pBW + 1}, s{pAW + 1}
        s_and_b32 s{SW + 1}, s{SW + 1}, 0xffff
        s_mov_b32 s{SW + 2}, {576 * 3456}
        s_mov_b32 s{SW + 3}, 0x20000
        """
        a(srdw)
        for j in range(6):
            a("\n".join(d0[j]))
        Lg = a.label("nogate")
        a(f"s_cmp_eq_u32 s{sHGB}, 0\ns_cbranch_scc0 {Lg}")
        a.skip_begin()
        a(f"""
        v_lshlrev_b32 v2, 2, v0
        v_add_u32 v3, 256, v0
        v_min_u32 v3, 287, v3
        v_lshlrev_b32 v3, 2, v3
        global_load_dword v{vGT}, v2, {sr(pGW, 2)}
        global_load_dword v{vGT2}, v3, {sr(pGW, 2)}
        """)
        a.skip_end()
        a(f"{Lg}:")
        for i in range(2, 6):
            a(f"v_add_u32 v2, {256 * i}, v0")
            a(d0[4 + i][0])
            a(waddr(2, vD[4 + i]))
            a(d0[4 + i][1])
        a(f"v_add_u32 v2, 1408, v0")
        a(waddr(2, vD[10]))
        a(f"""
        s_lshl_b32 s{sT0}, s{sRT}, 7
        s_sub_u32 s{sT0}, s{sT0}, 16
        s_max_i32 s{sT0}, s{sT0}, 0
        s_add_u32 s{sT0}, s{sT0}, s{sW}
        s_mul_i32 s{sT0}, s{sT0}, 1152
        v_add_u32 v5, s{sT0}, v5
        s_cmp_lt_u32 s{sW}, 2
        s_cselect_b64 vcc, -1, 0
        s_cselect_b32 s{S10}, s{SX}, s{SW}
        s_cselect_b32 s{S10 + 1}, s{SX + 1}, s{SW + 1}
        s_cselect_b32 s{S10 + 2}, s{SX + 2}, s{SW + 2}
        s_mov_b32 s{S10 + 3}, 0x20000
        s_cselect_b32 s{sO10}, s{sOX}, s{sOW}
        s_mov_b32 s{sT0}, {WB + 22 * 1024}
        s_cselect_b32 s{sT0}, 16384, s{sT0}
        s_add_u32 s{sL10[0]}, s{sT0}, s{sWL}
        s_movk_i32 s{sT0}, {WS_}
        {d0[10][0]}
        v_cndmask_b32 v{vD[10]}, v{vD[10]}, v5, vcc
        {d0[10][1]}
        s_cmp_lt_u32 s{sW}, 2
        s_cselect_b32 s{sT0}, {XS}, s{sT0}
        s_add_u32 s{sL10[1]}, s{sL10[0]}, s{sT0}
        s_add_u32 s{sL10[2]}, s{sL10[1]}, s{sT0}
        s_lshl_b32 s{sW256}, s{sW}, 8
        v_lshrrev_b32 v2, 2, v0
        v_add_u32 v2, 1664, v2
        """)
        a(waddr(2, vD[11]))
        a(f"""
        {d0[11][0]}
        v_and_b32 v2, 3, v1
        v_lshl_add_u32 v{vD[11]}, v2, 2, v{vD[11]}
        {d0[11][1]}
        """)
        st.stamp_nw(a)
        a("\n".join(adv))

        rd = f"""
        v_lshrrev_b32 v2, 4, v1
        v_and_b32 v3, 15, v1
        v_bfe_u32 v4, v1, 2, 2
        v_and_b32 v5, 3, v1
        s_and_b32 s{sP0}, s{sW}, 1
        v_and_b32 v6, 7, v3
        v_xor_b32 v7, v2, v6
        v_lshlrev_b32 v7, 4, v7
        v_lshl_add_u32 v8, v3, 7, v7
        s_lshl_b32 s{sT0}, s{sP0}, 13
        v_add_u32 v{vXA[0][0]}, s{sT0}, v8
        v_xor_b32 v{vXA[0][1]}, 64, v{vXA[0][0]}
        v_xor_b32 v{vXA[1][0]}, 0x2000, v{vXA[0][0]}
        v_xor_b32 v{vXA[1][1]}, 0x2040, v{vXA[0][0]}
        v_add_u32 v{vXH[0]}, 16384, v8
        v_xor_b32 v{vXH[1]}, 64, v{vXH[0]}
        ; W rows: (8g+2r)*432
        v_lshlrev_b32 v6, 2, v2
        v_add_u32 v6, v6, v4
        v_mul_u32_u24 v6, 864, v6
        s_mul_i32 s{sT0}, s{sW}, 36
        s_lshl_b32 s{sT1}, s{sP0}, 2
        s_add_u32 s{sT0}, s{sT0}, s{sT1}
        s_add_u32 s{sT0}, s{sT0}, {WB}
        v_lshl_add_u32 v7, v5, 3, v6
        v_add_u32 v{vWA[0]}, s{sT0}, v7
        v_add_u32 v{vWA[1]}, {2 * WS_}, v{vWA[0]}
        s_lshr_b32 s{sT2}, s{sW}, 1
        s_mul_i32 s{sT0}, s{sT2}, 288
        s_add_u32 s{sT0}, s{sT0}, {WB + 32}
        v_mul_u32_u24 v7, 72, v5
        v_add3_u32 v6, v6, v7, s{sT0}
        v_lshl_add_u32 v7, v2, 3, v4
        v_lshlrev_b32 v7, 3, v7
        v_lshrrev_b32 v8, 1, v5
        v_and_b32 v8, s{sT2}, v8
        v_cmp_eq_u32 vcc, 1, v8
        """
        for kk in range(2):
            for jj in range(2):
                rd += f"""
                v_add_u32 v8, {(32 * kk + jj) * 432}, v6
                v_add_u32 v9, {GOFF + (32 * kk + 4 * jj) * 8}, v7
                v_cndmask_b32 v{vWL[2 * kk + jj]}, v8, v9, vcc
                """
        rd += f"""
        v_mov_b32 v8, 512
        v_mov_b32 v9, {WS_}
        v_cndmask_b32 v{vdA}, v9, v8, vcc
        v_mov_b32 v9, {(-2 * WS_) & 0xffffffff}
        v_cndmask_b32 v{vdB}, v9, v8, vcc
        s_getreg_b32 s{sXCC}, hwreg(HW_REG_XCC_ID, 0, 4)
        s_add_u32 s{sXCC}, s{sXCC}, 1
        s_lshl_b32 s{sT0}, s{sG}, 2
        s_add_u32 s{sT0}, s{sT0}, 128
        v_mov_b32 v{vPUB}, s{sT0}
        v_mov_b32 v{vDEC}, s{sXCC}
        s_mov_b32 s{sVAL}, 0
        s_sub_u32 s{sT0}, 9, s{sST0}
        v_lshrrev_b32 v6, 5, v0
        v_add_u32 v6, s{sT0}, v6
        v_subrev_u32 v7, 9, v6
        v_min_u32 v6, v6, v7
        v_and_b32 v7, 31, v0
        v_lshlrev_b32 v7, 4, v7
        v_lshl_add_u32 v6, v6, 9, v7
        v_add_u32 v6, {GOFF}, v6
        s_sub_u32 s{sT0}, 8, s{sST0}
        s_lshl_b32 s{sT0}, s{sT0}, 9
        s_add_u32 s{sT0}, s{sT0}, {GOFF}
        v_min_u32 v7, 31, v0
        v_lshlrev_b32 v7, 4, v7
        v_add_u32 v7, s{sT0}, v7
        v_mov_b32 v{T + 1}, 0
        v_mov_b32 v{T + 3}, 0
        v_mov_b32 v{T + 5}, 0
        v_mov_b32 v{T + 7}, 0
        """
        rd = atoms(rd)
        per = (len(rd) + 23) // 24
        per1 = -(-60 // 12)
        k = 0
        for j in range(12):
            d = dma(j, 1)
            a(d[0])
            for x in rd[k:k + per1]:
                a(x)
            k += per1
            a(d[1])
        a("\n".join(adv))
        st.stamp_nw(a)
        Lp = a.label("nopub")
        a(f"s_cmp_eq_u32 s{sU0}, 0\ns_cbranch_scc0 {Lp}")
        a.skip_begin()
        a(f"""
        s_waitcnt vmcnt(26)
        s_mov_b64 exec, 1
        global_store_dword v{vPUB}, v{vDEC}, {sr(pDBG, 2)}
        s_mov_b64 exec, -1
        """)
        a.skip_end()
        a(f"{Lp}:")
        assert any("v_mov_b32 v%d, s%d" % (vDEC, sXCC) in x for x in rd[:k])
        per2 = -(-(len(rd) - k) // 12)
        for j in range(12):
            d = dma(j, 2)
            a(d[0])
            for x in rd[k:k + per2]:
                a(x)
            k += per2
            a(d[1])
        a("\n".join(adv))
        st.stamp(a)
        Lg2 = a.label("nogate2")
        a(f"s_waitcnt vmcnt(24)\ns_cmp_eq_u32 s{sHGB}, 0\ns_cbranch_scc0 {Lg2}")
        a.skip_begin()
        a(f"""
        v_and_b32 v{T}, 0xffff, v{vGT}
        v_lshrrev_b32 v{T + 2}, 16, v{vGT}
        v_and_b32 v{T + 4}, 0xffff, v{vGT2}
        v_lshrrev_b32 v{T + 6}, 16, v{vGT2}
        ds_write_b128 v6, {vr(T, 4)}
        ds_write_b128 v7, {vr(T + 4, 4)}
        s_waitcnt lgkmcnt(0)
        """)
        a.skip_end()
        a(f"{Lg2}:\ns_barrier")
        st.stamp_nw(a)

        df = f"""
        v_mov_b32 v{vONE}, 1
        s_lshr_b32 s{sCG}, s{sIDX}, 2
        s_mul_i32 s{sT3}, s{sCG}, 144
        s_mov_b32 s{SAO}, s{pAO}
        s_and_b32 s{SAO + 1}, s{pAO + 1}, 0xffff
        s_mov_b32 s{SAO + 2}, {576 * 1152}
        s_mov_b32 s{SAO + 3}, 0x20000
        s_mov_b32 s{SBO}, s{pBO}
        s_and_b32 s{SBO + 1}, s{pBO + 1}, 0xffff
        s_mov_b32 s{SBO + 2}, {576 * 1152}
        s_mov_b32 s{SBO + 3}, 0x20000
        """

        def oaddr(n, out, out2=None):
            s = f"""
            v_mul_u32_u24 v6, {m9}, v{n}
            v_lshrrev_b32 v6, {s9}, v6
            v_mul_u32_u24 v7, 9, v6
            v_sub_u32 v7, v{n}, v7
            v_lshl_add_u32 v7, v7, 4, s{sT3}
            ; j = 4*(R&1) + ((R>>1)&3)
            v_bfe_u32 v8, v6, 1, 2
            v_and_b32 v9, 1, v6
            v_lshl_or_b32 v8, v9, 2, v8
            ; 18*(R>>4) + 2*((R>>4)&1) + (R&8) + j
            v_lshrrev_b32 v9, 4, v6
            v_mul_u32_u24 v{T}, 18, v9
            v_and_b32 v9, 1, v9
            v_lshl_add_u32 v{T}, v9, 1, v{T}
            v_and_b32 v9, 8, v6
            v_add3_u32 v{T}, v{T}, v9, v8
            v_mul_u32_u24 v{T}, 1152, v{T}
            v_add_u32 v{out}, v{T}, v7
            """
            if out2 is not None:
                s += f"""
                v_lshrrev_b32 v9, 3, v6
                v_mul_u32_u24 v{T}, 72, v9
                v_lshrrev_b32 v9, 1, v8
                v_mul_u32_u24 v{T + 1}, 18, v9
                v_and_b32 v9, 1, v9
                v_xor_b32 v9, 1, v9
                v_lshl_add_u32 v{T + 1}, v9, 4, v{T + 1}
                v_and_b32 v9, 1, v8
                v_add3_u32 v{T}, v{T}, v{T + 1}, v9
                v_subrev_u32 v{T}, {72 * 16}, v{T}
                v_mul_u32_u24 v{T}, 1152, v{T}
                v_add_u32 v{T}, v{T}, v7
                v_add_u32 v{T + 1}, {432 * 1152}, v{out}
                v_cmp_le_u32 vcc, 128, v6
                v_cndmask_b32 v{out2}, v{T + 1}, v{T}, vcc
                """
            return s
        df += oaddr(0, vP1[0])
        for i in range(1, 6):
            df += f"v_add_u32 v{T + 2}, {256 * i}, v0\n"
            df += oaddr(T + 2, vP1[i], vP2[i - 4] if i >= 4 else None)
        df += f"""
        s_movk_i32 s{sT0}, 1408
        s_cmp_lt_u32 s{sW}, 2
        s_cselect_b32 s{sT0}, 1024, s{sT0}
        v_add_u32 v{T + 2}, s{sT0}, v0
        """
        df += oaddr(T + 2, vP1[6], vP2[2])
        df += f"v_lshrrev_b32 v{T + 2}, 2, v0\nv_add_u32 v{T + 2}, 1664, v{T + 2}\n"
        df += oaddr(T + 2, vP1[7], vP2[3])
        df += f"""
        v_lshl_add_u32 v{vP1[7]}, v5, 2, v{vP1[7]}
        v_lshl_add_u32 v{vP2[3]}, v5, 2, v{vP2[3]}
        s_cmp_lt_u32 s{sW}, 2
        s_cselect_b64 vcc, -1, 0
        v_cndmask_b32 v{vP3}, v{vP2[2]}, v{vP1[6]}, vcc
        v_lshlrev_b32 v6, 2, v2
        v_sub_u32 v6, v3, v6
        v_mov_b32 v9, {NEG}
        s_mov_b32 s{sM0 + 4}, -1
        s_mov_b32 s{sM0 + 5}, 0
        """
        for r in range(4):
            df += f"""
            v_subrev_u32 v7, {r}, v6
            v_cmp_gt_u32 vcc, 8, v7
            v_cmp_gt_i32 {sr(sM0, 2)}, -8, v7
            v_cmp_le_i32 {sr(sM0 + 2, 2)}, 0, v7
            v_cndmask_b32 v{cOwn + r}, v9, 0, vcc
            v_cndmask_b32 v{cPrev + r}, v9, 0, {sr(sM0, 2)}
            v_cndmask_b32 v{T + r}, 0, -1, {sr(sM0 + 2, 2)}
            s_andn2_b64 {sr(sM0, 2)}, {sr(sM0 + 4, 2)}, {sr(sM0 + 2, 2)}
            v_cndmask_b32 v{T + 4 + r}, v9, 0, {sr(sM0, 2)}
            """
        df += f"""
        v_and_b32 v{T}, 0xffff, v{T}
        v_and_b32 v{T + 1}, 0xffff0000, v{T + 1}
        v_and_b32 v{T + 2}, 0xffff, v{T + 2}
        v_and_b32 v{T + 3}, 0xffff0000, v{T + 3}
        v_or_b32 v{mO}, v{T}, v{T + 1}
        v_or_b32 v{mO + 1}, v{T + 2}, v{T + 3}
        v_not_b32 v{mP}, v{mO}
        v_not_b32 v{mP + 1}, v{mO + 1}
        s_cmp_eq_u32 s{sP0}, 0
        s_cselect_b64 vcc, -1, 0
        s_cmp_eq_u32 s{sRT}, 0
        s_cselect_b64 {sr(sM0, 2)}, -1, 0
        """
        for r in range(4):
            df += f"""
            v_cndmask_b32 v7, v{cPrev + r}, v{T + 4 + r}, vcc
            v_cndmask_b32 v8, v{T + 4 + r}, v{cPrev + r}, vcc
            v_cndmask_b32 v{cH[0] + r}, v7, v9, {sr(sM0, 2)}
            v_cndmask_b32 v{cH[1] + r}, v8, v9, {sr(sM0, 2)}
            """
        df += f"""
        s_lshr_b32 s{sT2}, s{sW}, 1
        s_mul_i32 s{sT0}, s{sW}, 2560
        s_add_u32 s{sT0}, s{sT0}, {EXQ}
        v_lshlrev_b32 v6, 3, v1
        v_add_u32 v{vEW}, s{sT0}, v6
        s_lshl_b32 s{sT0}, s{sT2}, 7
        s_lshl_b32 s{sT1}, s{sP0}, 2
        s_add_u32 s{sT0}, s{sT0}, s{sT1}
        s_add_u32 s{sT0}, s{sT0}, {EXQ}
        v_lshlrev_b32 v6, 3, v3
        v_add_u32 v6, s{sT0}, v6
        s_mul_i32 s{sT0}, s{sP0}, 2560
        s_sub_u32 s{sT1}, 2560, s{sT0}
        v_mov_b32 v9, {EXZ}
        v_cmp_eq_u32 vcc, 0, v2
        v_add_u32 v7, s{sT0}, v6
        v_add_u32 v8, s{sT1}, v6
        v_add_u32 v{vEK[0]}, 256, v7
        v_add_u32 v{vEK[1]}, 256, v8
        v_cndmask_b32 v{vEQ[0]}, v9, v7, vcc
        v_cndmask_b32 v{vEQ[1]}, v9, v8, vcc
        v_lshl_add_u32 v6, v2, 2, v4
        v_lshlrev_b32 v6, 3, v6
        s_lshl_b32 s{sT3}, s{sT2}, 7
        s_add_u32 s{sT3}, s{sT3}, {EXV}
        v_add_u32 v6, s{sT3}, v6
        v_add_u32 v7, s{sT0}, v6
        v_add_u32 v8, s{sT1}, v6
        """
        for t in range(4):
            df += f"""
            v_cmp_eq_u32 vcc, {t}, v5
            v_cndmask_b32 v{vEV[0][t]}, v9, v7, vcc
            v_cndmask_b32 v{vEV[1][t]}, v9, v8, vcc
            """
        df += f"""
        v_min_u32 v6, 4, v1
        v_lshlrev_b32 v6, 9, v6
        v_add_u32 v6, {EXZ}, v6
        v_mov_b32 v8, 0
        v_mov_b32 v9, 0
        ds_write_b64 v6, v[8:9]
        s_mov_b32 s{SWS}, s{pWS}
        s_and_b32 s{SWS + 1}, s{pWS + 1}, 0xffff
        s_mov_b32 s{SWS + 2}, {GATE_WS + 8192}
        s_mov_b32 s{SWS + 3}, 0x20000
        s_mul_i32 s{sT0}, s{sRT}, {8 * 18432}
        s_mul_i32 s{sT1}, s{sBR}, {OBR}
        s_add_u32 s{sT0}, s{sT0}, s{sT1}
        s_lshl_b32 s{sT1}, s{sHG}, 11
        s_lshl_b32 s{sT2}, s{sW}, 9
        s_add_u32 s{sT1}, s{sT1}, s{sT2}
        s_add_u32 s{sT1}, s{sT1}, s{sT0}
        v_and_b32 v{T}, 1, v2
        v_mul_u32_u24 v{T}, 18432, v{T}
        v_lshrrev_b32 v7, 1, v2
        v_lshl_add_u32 v{T}, v7, 8, v{T}
        v_lshl_add_u32 v{T}, v3, 4, v{T}
        v_add_u32 v{T}, s{sT1}, v{T}
        s_lshl_b32 s{sT1}, s{sHG}, 8
        s_lshl_b32 s{sT2}, s{sW}, 2
        s_add_u32 s{sT1}, s{sT1}, s{sT2}
        s_add_u32 s{sT1}, s{sT1}, s{sT0}
        s_add_u32 s{sT1}, s{sT1}, 16384
        v_mul_u32_u24 v7, 18432, v2
        v_lshl_add_u32 v7, v3, 4, v7
        v_add_u32 v7, s{sT1}, v7
        s_mul_i32 s{sT0}, s{sP0}, {4 * 18432}
        s_sub_u32 s{sT1}, {4 * 18432}, s{sT0}
        v_add_u32 v{vSO[0]}, s{sT0}, v{T}
        v_add_u32 v{vSO[1]}, s{sT1}, v{T}
        v_add_u32 v{vSL[0]}, s{sT0}, v7
        v_add_u32 v{vSL[1]}, s{sT1}, v7
        s_lshl_b32 s{sT1}, s{sRT}, 9
        s_lshl_b32 s{sT2}, s{sP0}, 8
        s_add_u32 s{sT1}, s{sT1}, s{sT2}
        s_add_u32 s{sT1}, s{sT1}, {GATE_WS}
        v_lshlrev_b32 v7, 2, v3
        v_add_u32 v{vSG}, s{sT1}, v7
        v_lshl_add_u32 v7, v2, 2, v4
        v_mul_u32_u24 v7, 288, v7
        v_lshl_add_u32 v7, v5, 3, v7
        s_lshr_b32 s{sT0}, s{sW}, 1
        s_mul_i32 s{sT0}, s{sT0}, {WB}
        v_add_u32 v{vFB[0]}, s{sT0}, v7
        v_add_u32 v{vFB[1]}, {9 * BLK}, v{vFB[0]}
        """
        df = atoms(df)

        tr = lambda dst, adr, off: f"ds_read_b64_tr_b16 {ar(dst, 2)}, v{adr} offset:{off}"

        def reads(F, kk, u):
            wa = vWA[1] if u == 2 else vWA[0]
            o = lambda sec, jj: (0 if u == 2 else u * WS_) + (32 * kk + jj) * 432 + sec * 144
            xr = lambda s: f"ds_read_b128 {ar(F['X'][s], 4)}, v{vXA[s >> 2][kk]} offset:{u * XS + 2048 * (s & 3)}"
            L = [tr(F['WQ'] + 2 * jj, wa, o(0, jj)) for jj in range(2)]
            L += [xr(s) for s in range(8)]
            L += [tr(F['WK'] + 2 * jj, wa, o(1, jj)) for jj in range(2)]
            L += [f"ds_read_b128 {ar(F['XH'], 4)}, v{vXH[kk]} offset:{u * XS}"]
            L += [tr(F['WV'] + 2 * jj, wa, o(2, jj)) for jj in range(2)]
            L += [tr(F['WL'] + 2 * jj, vWL[2 * kk + jj], 0) for jj in range(2)]
            if 'r' in st.abl:
                L = [""] * len(L)
            return L

        def mfmas(F, zero=False):
            mf = lambda d, x, y: f"v_mfma_f32_16x16x32_bf16 {vr(d, 4)}, {ar(x, 4)}, {ar(y, 4)}, {'0' if zero else vr(d, 4)}"
            L = [mf(aQ[s], F['WQ'], F['X'][s]) for s in range(8)]
            L += [mf(aK[s], F['WK'], F['X'][s]) for s in range(8)]
            L += [mf(aKH, F['WK'], F['XH'])]
            L += [mf(aV[s], F['X'][s], F['WV']) for s in range(8)]
            L += [mf(aVH, F['XH'], F['WV'])]
            L += [mf(aL[t], F['WL'], F['X'][t]) for t in range(4)]
            L += [mf(aLH, F['WL'], F['XH'])]
            if 'm' in st.abl:
                L = [""] * len(L)
            return L

        def scatter(n, items, start, span):
            d = {}
            for k, it in enumerate(items):
                s = start + (k * span) // len(items)
                d.setdefault(min(s, n - 1), []).append(it)
            return d

        rP = vP1[:4] + vP1
        nlines = lambda L: sum(len([y for y in x.split("\n") if y.strip()]) for x in L)
        dmask = 0 if 'd' in st.abl else opt.get('dmask', 4095)
        nv = bin(dmask).count("1") if dmask else 12

        def w0(code, cond=None):
            L = a.label("w0")
            a(f"s_cmp_eq_u32 s{sW}, 0\ns_cbranch_scc0 {L}")
            a.skip_begin()
            if cond:
                a(cond.format(L=L))
            a(code.format(L=L))
            a.skip_end()
            a(f"{L}:")

        check = f"""
        v_readfirstlane_b32 s{sU0}, v{vDEC}
        s_cmp_eq_u32 s{sU0}, s{sXCC}
        s_cbranch_scc0 {{L}}
        s_mov_b32 s{sVAL}, 1
        s_mov_b64 exec, 1
        global_atomic_add v{vFA}, v{vONE}, {sr(pWS, 2)}
        s_mov_b64 exec, -1
        """
        notval = f"s_cmp_eq_u32 s{sVAL}, 0\ns_cbranch_scc0 {{L}}"
        for j in range(9):
            u = j % 3
            ud = (u + 2) % 3
            fill, pre = {}, {}

            def add(d, tgt=fill):
                for k, v in d.items():
                    tgt.setdefault(k, []).extend(v)
            if j:
                a(f"s_waitcnt vmcnt({nv}) lgkmcnt(0)\ns_barrier")
            if j == 2:
                w0(f"global_load_dword v{vDEC}, v{vPUB}, {sr(pDBG, 2)}")
            if j == 3:
                w0(check)
            if j == 4:
                w0(f"global_load_dword v{vDEC}, v{vPUB}, {sr(pDBG, 2)} sc1", notval)
            if j == 5:
                w0(check, notval)
            if j == 7:
                w0("s_mov_b64 exec, 1\nv_mov_b32 v8, 0\n" + PL.format(d=f"v{vDEC}", a=f"v{vFA}", b=sr(pWS, 2), z="v8") +
                   "\ns_mov_b64 exec, -1")
            if j == 8:
                w0(f"""
                v_readfirstlane_b32 s{sU0}, v{vDEC}
                s_cmp_eq_u32 s{sU0}, {99 if 'S' in st.abl else 32}
                s_cselect_b32 s{sU0}, 3, 1
                s_mul_i32 s{sU0}, s{sU0}, s{sVAL}
                v_mov_b32 v8, s{sU0}
                v_mov_b32 v9, {EXD}
                ds_write_b32 v9, v8
                """)
            if j == 7:
                assert not df, len(df)
                a(f"""
                s_cmp_lt_u32 s{sW}, 2
                s_cselect_b32 s{S10}, s{SAO}, s{SBO}
                s_cselect_b32 s{S10 + 1}, s{SAO + 1}, s{SBO + 1}
                s_mov_b32 s{S10 + 2}, s{SAO + 2}
                """)
            if j == 8:
                a(f"""
                s_mov_b32 s{sOX}, {4 * 36 * 1152}
                s_mov_b32 s{sOW}, {6 * 36 * 1152}
                s_cmp_lt_u32 s{sW}, 2
                s_cselect_b32 s{sO10}, s{sOX}, s{sOW}
                """)
            add(scatter(62, reads(A_, 0, u), 0, opt['rspan']))
            add(scatter(62, reads(B_, 1, u), 31, opt['rspan']))
            if j >= 1:
                if j < 7:
                    D = [dma(k, ud) for k in range(12)]
                elif j == 7:
                    D = [dma(k, ud, regs=rP, sx=SAO, sw=SBO, ox="0", ow="0", o10="0") for k in range(12)]
                else:
                    D = [dma(k, ud, regs=rP, sx=SAO, sw=SBO) for k in range(12)]
                D = [x for k, x in enumerate(D) if (dmask >> k) & 1]
                if D:
                    dpl = scatter(62, D, opt['dma0'], opt['dspan'])
                    for k, v in dpl.items():
                        assert len(v) == 1
                        pre.setdefault(k, []).append(v[0][0])
                        fill.setdefault(k, []).insert(0, v[0][1])
                    last = max(dpl.keys())
                else:
                    last = 40
                if j < 6:
                    add(scatter(62, adv, last + 1, min(9, 61 - last)))
            if j < 8:
                dl = vdB if u == 2 else vdA
                add(scatter(62, [f"v_add_u32 v{r}, v{dl}, v{r}" for r in vWL], 31 + opt['rspan'], 4))
            M = mfmas(B_) + mfmas(A_, zero=(j == 0))
            if j == 0:
                for n in range(31):
                    for x in fill.get(n, []):
                        a(x)
                cnt = 0
                while df and cnt < opt['h1']:
                    x = df.pop(0)
                    cnt += nlines([x])
                    a(x)
            for n in range(31 if j == 0 else 0, 62):
                if n == 31:
                    a("s_waitcnt lgkmcnt(0)")
                for x in pre.get(n, []):
                    a(x)
                a(M[n])
                F = fill.get(n, [])
                for x in F:
                    a(x)
                cnt = nlines(F) + nlines(pre.get(n + 1, []))
                while df and cnt + nlines(df[:1]) <= opt['fillmax'] + (nlines(df[:1]) > 2 and cnt == 0):
                    x = df.pop(0)
                    cnt += nlines([x])
                    a(x)
        a("s_waitcnt lgkmcnt(0)")
        st.stamp(a)
        if 'E' in st.abl:
            a("s_waitcnt vmcnt(0)")
            st.stamp(a)
            st.stamp_store(a, 6)
            a("s_endpgm")

        pk = lambda d, x: f"v_cvt_pk_bf16_f32 v{d}, v{x}, v{x + 1}"
        rn = lambda d, x: f"v_cvt_pk_bf16_f32 v{d}, 0, v{x}"
        M = mfmas(B_)
        for n in range(26, 31):
            a(M[n])
        rest = M[:26]
        ex = []
        LT = aL + [aLH]
        for k in range(5):
            ex.append(f"{pk(T + 2 * k, LT[k])}\n{pk(T + 2 * k + 1, LT[k] + 2)}")
        for k in range(5):
            ex.append(f"ds_write_b64 v{vEW}, {vr(T + 2 * k, 2)} offset:{((k + 1) % 5) * 512}")
        for n in range(3):
            a(rest[n])
        for n in range(3, 13):
            a(rest[n])
            a(ex[n - 3])
        Lg3 = a.label("nogate3")
        a(f"""
        s_lshl_b32 s{sT0}, s{sHGB}, 2
        s_xor_b32 s{sT1}, s{sW}, 2
        s_add_u32 s{sT0}, s{sT0}, s{sT1}
        s_cmp_lt_u32 s{sT0}, 2
        s_cbranch_scc0 {Lg3}
        """)
        a.skip_begin()
        a(f"s_mov_b32 s{sM0}, 0\ns_mov_b32 s{sM0 + 1}, 0xffff\ns_mov_b64 exec, {sr(sM0, 2)}")
        for t in range(4):
            a(f"buffer_store_dword v{aL[t]}, v{vSG}, {sr(SWS, 4)}, 0 offen offset:{t * 64} sc1")
        a("s_mov_b64 exec, -1")
        a.skip_end()
        a(f"{Lg3}:")

        def pack_in_place(r):
            return f"{pk(r, r)}\n{pk(r + 1, r + 2)}\nv_mov_b32 v{r + 3}, 0"
        for n in range(13, 26):
            a(rest[n])
            if n - 13 < 8:
                a(pack_in_place(aQ[n - 13]))
            else:
                a(pack_in_place(aK[n - 21]))
        a(f"s_waitcnt vmcnt({nv}) lgkmcnt(0)\ns_barrier")
        st.stamp_nw(a)
        for s in range(8):
            a(f"ds_read_b32 v{aQ[s] + 2}, v{vEQ[s >> 2]} offset:{((s & 3) + 1) * 512}")
        for s in range(5, 8):
            a(pack_in_place(aK[s]))
        a(pack_in_place(aKH))
        a(f"ds_read_b32 v{aKH + 2}, v{vEK[0]}")
        for s in range(8):
            a(f"ds_read_b32 v{aK[s] + 2}, v{vEK[s >> 2]} offset:{((s & 3) + 1) * 512}")
        a(f"v_mov_b32 v9, {EXD}\nds_read_b32 v{vDEC}, v9")
        Vp = lambda q, t: 220 + 10 * q + 2 * (3 - t)
        for s in range(8):
            a(pk(Vp(s >> 2, s & 3), aV[s]))
            a(pk(Vp(s >> 2, s & 3) + 1, aV[s] + 2))
        for q in range(2):
            a(pk(Vp(q, -1), aVH))
            a(pk(Vp(q, -1) + 1, aVH + 2))
        So = aV
        Sp = aL + [240 + 4 * t for t in range(4)]
        mfc = lambda d, x, y, c: f"v_mfma_f32_16x16x32_bf16 {vr(d, 4)}, {x}, {y}, {c}"
        r9 = vP1[:4] + vP1[:4] + [vP2[0], vP2[1], vP3, vP2[3]]
        a(f"""
        s_mov_b32 s{sOX}, {8 * 36 * 1152}
        s_mov_b32 s{sOW}, {12 * 36 * 1152}
        s_cmp_lt_u32 s{sW}, 2
        s_cselect_b32 s{sO10}, s{sOX}, 0
        s_waitcnt lgkmcnt(0)
        """)
        D9 = [dma(j, 2, regs=r9, sx=SAO, sw=SBO, ow=(f"s{sOW}" if j < 8 else "0")) for j in range(12)]
        VL = lambda s: 208 + 4 * s
        k9 = 0
        for s in range(8):
            q, t = s >> 2, s & 3
            a(D9[k9][0])
            a(mfc(So[s], vr(aK[s], 4), vr(aQ[s], 4), vr(cOwn, 4)))
            a(D9[k9][1]); k9 += 1
            a(tr(VL(s), vEV[q][t], (t + 1) * 512))
            if s < 4:
                a(D9[k9][0])
            a(mfc(Sp[s], vr(aK[s - 1] if t else aKH, 4), vr(aQ[s], 4), vr(cPrev if t else cH[q], 4)))
            if s < 4:
                a(D9[k9][1]); k9 += 1
            a(tr(VL(s) + 2, vEV[q][t], t * 512))
        assert k9 == 12
        a(f"""
        s_mov_b32 s{sM0}, {SCALE}
        s_mov_b32 s{sM0 + 1}, {SCALE}
        s_mov_b32 s{sM0 + 2}, {LOG2E}
        s_mov_b32 s{sM0 + 3}, {LOG2E}
        v_readfirstlane_b32 s{sVAL}, v{vDEC}
        """)
        WF = lambda ks, mt: ((ks % 12) * 5 + mt) * 4

        def frag_reads(ks):
            b = vFB[1] if ks >= 9 else vFB[0]
            return [tr(WF(ks, mt) + 2 * jj, b, (ks % 9) * BLK + jj * 144 + mt * 32) for mt in range(5) for jj in range(2)]
        early = [x for ks in range(6) for x in frag_reads(ks)]

        S8 = range(8)
        Pk = [200 + 2 * s for s in S8]
        Mx = [240 + s for s in S8]
        Bc = [248 + s for s in S8]
        B1 = []
        for s in S8:
            for r in range(4):
                B1.append(f"v_max_f32 v{So[s] + r}, v{So[s] + r}, v{Sp[s] + r}")
        for s in S8:
            for r in range(4):
                B1.append(rn(So[s] + r, So[s] + r))
        for s in S8:
            for r in (0, 2):
                B1.append(f"v_pk_mul_f32 {vr(So[s] + r, 2)}, {vr(So[s] + r, 2)}, {sr(sM0, 2)}")
        for s in S8:
            for r in range(4):
                B1.append(rn(So[s] + r, So[s] + r))
        for s in S8:
            B1.append(f"v_max3_f32 v{Mx[s]}, v{So[s]}, v{So[s] + 1}, v{So[s] + 2}")
        for s in S8:
            B1.append(f"v_max_f32 v{Mx[s]}, v{Mx[s]}, v{So[s] + 3}")
        ei = 0
        for k, x in enumerate(B1):
            a(x)
            if k % 2 == 1 and ei < len(early):
                a(early[ei]); ei += 1
        assert ei == len(early), (ei, len(B1))

        def reduce_bcast(op, mid):
            seq = []
            for q in range(2):
                m = Mx[4 * q:4 * q + 4]
                b = Bc[4 * q:4 * q + 4]
                seq.append(f"""
                v_permlane16_swap_b32 v{m[0]}, v{m[1]}
                v_permlane16_swap_b32 v{m[2]}, v{m[3]}
                {op} v{m[0]}, v{m[0]}, v{m[1]}
                {op} v{m[2]}, v{m[2]}, v{m[3]}
                v_permlane32_swap_b32 v{m[0]}, v{m[2]}
                {op} v{b[0]}, v{m[0]}, v{m[2]}
                {mid(b[0])}
                v_mov_b32 v{b[2]}, v{b[0]}
                v_permlane32_swap_b32 v{b[0]}, v{b[2]}
                v_mov_b32 v{b[1]}, v{b[0]}
                v_mov_b32 v{b[3]}, v{b[2]}
                v_permlane16_swap_b32 v{b[0]}, v{b[1]}
                v_permlane16_swap_b32 v{b[2]}, v{b[3]}
                """.strip().split("\n"))
            for x, y in zip(*seq):
                a(x)
                a(y)
        sel = lambda s, n: (f"op_sel:[{','.join(['0'] * (n - 1))},1] op_sel_hi:[{','.join(['1'] * n)}]" if s & 1
                            else f"op_sel_hi:[{','.join(['1'] * (n - 1))},0]")
        bp = lambda s: vr(Bc[s] & ~1, 2)
        reduce_bcast("v_max_f32", lambda b: f"v_mul_f32 v{b}, s{sM0 + 2}, v{b}")
        a("s_waitcnt lgkmcnt(0)\ns_barrier")
        r10 = [None] * 4 + vP1[:4] + [vP2[0], vP2[1], vP2[2], vP2[3]]
        D10 = [dma(j, 0, regs=r10, sw=SAO, ow=(f"s{sOW}" if j < 8 else "0")) for j in list(range(4, 10)) + [11]]
        L10 = a.label("no10")
        a(f"s_cmp_lt_u32 s{sW}, 2\ns_cbranch_scc1 {L10}")
        a.skip_begin()
        a("\n".join(dma(10, 0, regs=r10, s10=SAO, o10="0")))
        a.skip_end()
        a(f"{L10}:")
        for s in S8:
            if s < 7:
                a(D10[s][0])
            for r in (0, 2):
                a(f"v_pk_fma_f32 {vr(So[s] + r, 2)}, {vr(So[s] + r, 2)}, {sr(sM0 + 2, 2)}, {bp(s)} {sel(s, 3)} neg_lo:[0,0,1] neg_hi:[0,0,1]")
            if s < 7:
                a(D10[s][1])
        for s in S8:
            for r in range(4):
                a(f"v_exp_f32 v{So[s] + r}, v{So[s] + r}")
        for s in S8:
            a(f"v_pk_add_f32 {vr(Pk[s], 2)}, {vr(So[s], 2)}, {vr(So[s] + 2, 2)}")
        for s in S8:
            a(f"v_add_f32 v{Mx[s]}, v{Pk[s]}, v{Pk[s] + 1}")
        reduce_bcast("v_add_f32", lambda b: f"v_rcp_f32 v{b}, v{b}")
        Pf, Om = aQ, aK
        Ol = [192, 196]
        Op = [200, 208]
        OLp = [216, 217]
        for s in S8:
            for r in (0, 2):
                a(f"v_pk_mul_f32 {vr(So[s] + r, 2)}, {vr(So[s] + r, 2)}, {bp(s)} {sel(s, 2)}")
        for s in S8:
            a(pk(Pk[s], So[s]))
            a(pk(Pk[s] + 1, So[s] + 2))
        for s in S8:
            a(f"v_and_b32 v{Pf[s]}, v{mO}, v{Pk[s]}")
            a(f"v_and_b32 v{Pf[s] + 1}, v{mO + 1}, v{Pk[s] + 1}")
            a(f"v_and_b32 v{Pf[s] + 2}, v{mP}, v{Pk[s]}")
            a(f"v_and_b32 v{Pf[s] + 3}, v{mP + 1}, v{Pk[s] + 1}")
            if s >= 1:
                a(mfc(Om[s - 1], vr(Vp((s - 1) >> 2, (s - 1) & 3), 4), vr(Pf[s - 1], 4), "0"))
        a(mfc(Om[7], vr(Vp(1, 3), 4), vr(Pf[7], 4), "0"))
        for s in S8:
            q, t = s >> 2, s & 3
            a(mfc(Ol[q], ar(VL(s), 4), vr(Pf[s], 4), vr(Ol[q], 4) if t else "0"))
            a(pk(Op[q] + 2 * t, Om[s]))
            a(pk(Op[q] + 2 * t + 1, Om[s] + 2))
        a(f"""
        s_mov_b32 s{sT2}, {2 * 18432}
        s_cmp_eq_u32 s{sP0}, 1
        s_cselect_b64 vcc, -1, 0
        """)
        for q in range(2):
            for hh in range(2):
                a(f"v_permlane16_swap_b32 v{Op[q] + 4 * hh}, v{Op[q] + 4 * hh + 2}")
                a(f"v_permlane16_swap_b32 v{Op[q] + 4 * hh + 1}, v{Op[q] + 4 * hh + 3}")
        for q in range(2):
            a(pk(OLp[q], Ol[q]))
            a(pk(218 + q, Ol[q] + 2))
        for q in range(2):
            a(f"v_cndmask_b32 v{OLp[q]}, v{OLp[q]}, v{218 + q}, vcc")
        Lsl, Lsd = a.label("slow"), a.label("sdone")
        a(f"s_bitcmp1_b32 s{sVAL}, 1\ns_cbranch_scc0 {Lsl}")
        for sc in ("", " sc1"):
            if sc:
                a(f"{Lsl}:")
            a.skip_begin()
            for q in range(2):
                a(f"buffer_store_dwordx4 {vr(Op[q], 4)}, v{vSO[q]}, {sr(SWS, 4)}, 0 offen{sc}")
                a(f"buffer_store_dwordx4 {vr(Op[q] + 4, 4)}, v{vSO[q]}, {sr(SWS, 4)}, s{sT2} offen{sc}")
            for q in range(2):
                a(f"buffer_store_dword v{OLp[q]}, v{vSL[q]}, {sr(SWS, 4)}, 0 offen{sc}")
            if not sc:
                a(f"s_branch {Lsd}")
            a.skip_end()
        a(f"{Lsd}:")
        st.stamp(a)

        OF = 96
        ACC = 40
        vOB = [82, 83]
        vGB, vOUT, vXW, vXR = 84, 85, 86, 87
        vGL = [80, 81]
        vCP, vSLW = 10, 11
        sB2, sNH, sBLK = 8, 9, [6, 7]
        sK4 = [78, 79, 80, 81]
        a(f"""
        s_and_b32 s{sT1}, s{sIDX}, 1
        s_lshl_b32 s{sT1}, s{sT1}, 7
        v_add_u32 v6, s{sT1}, v{vFA}
        s_lshl_b32 s{sT1}, s{sRT}, 2
        v_mov_b32 v7, s{sT1}
        s_bfe_u32 s{sT1}, s{sIDX}, 0x10001
        s_lshl_b32 s{sT0}, s{sT1}, 7
        s_add_u32 s{sT0}, s{sT0}, 128
        v_add_u32 v{vCP}, s{sT0}, v{vFA}
        s_lshl_b32 s{sT0}, s{sG}, 1
        s_add_u32 s{sT0}, s{sT0}, s{sT1}
        s_lshl_b32 s{sT1}, s{sT0}, 2
        v_mov_b32 v{vSLW}, s{sT1}
        s_and_b32 s{sT1}, s{sIDX}, 3
        s_lshl_b32 s{sT1}, s{sT1}, 2
        s_lshl_b32 s{sT0}, s{sG}, 4
        s_add_u32 s{sT0}, s{sT0}, s{sT1}
        s_lshr_b32 s{sB2}, s{sW}, 1
        s_and_b32 s{sNH}, s{sW}, 1
        s_lshl_b32 s{sT1}, s{sNH}, 1
        s_add_u32 s{sT0}, s{sT0}, s{sT1}
        s_add_u32 s{sBLK[0]}, s{sT0}, s{sB2}
        s_xor_b32 s{sBLK[1]}, s{sBLK[0]}, 1
        v_lshlrev_b32 v9, 4, v1
        s_mul_i32 s{sT1}, s{sB2}, {OBR}
        s_mul_i32 s{sT0}, s{sBLK[0]}, 18432
        s_add_u32 s{sT0}, s{sT0}, s{sT1}
        v_add_u32 v{vOB[0]}, s{sT0}, v9
        s_mul_i32 s{sT0}, s{sBLK[1]}, 18432
        s_add_u32 s{sT0}, s{sT0}, s{sT1}
        v_add_u32 v{vOB[1]}, s{sT0}, v9
        s_movk_i32 s{sK4[0]}, 4096
        s_movk_i32 s{sK4[1]}, 8192
        s_movk_i32 s{sK4[2]}, 12288
        s_movk_i32 s{sK4[3]}, 16384
        v_lshlrev_b32 v{vGB}, 2, v3
        v_add_u32 v{vGB}, {GATE_WS}, v{vGB}
        s_mov_b32 s{sDONE}, 0
        s_waitcnt vmcnt(0)
        s_barrier
        """)
        Lf, Lf2 = a.label("noflag"), a.label("noflag2")
        a(f"s_cmp_eq_u32 s{sW}, 0\ns_cbranch_scc0 {Lf}")
        a.skip_begin()
        a(f"""
        s_mov_b64 exec, 1
        s_bitcmp1_b32 s{sVAL}, 1
        s_cbranch_scc0 {Lf2}
        global_atomic_add v6, v{vONE}, {sr(pWS, 2)} offset:128
        s_mov_b64 exec, -1
        s_branch {Lf}
        {Lf2}:
        global_atomic_add v7, v{vONE}, {sr(pDBG, 2)} sc1
        s_mov_b64 exec, -1
        """)
        a.skip_end()
        a(f"{Lf}:")
        st.stamp_nw(a)

        def oload(n, ks):
            so = "0" if ks < 4 else f"s{sK4[ks // 4 - 1]}"
            return f"buffer_load_dwordx4 {vr(OF + (n * 18 + ks) * 4, 4)}, v{vOB[n]}, {sr(SWS, 4)}, {so} offen offset:{(ks % 4) * 1024}"
        LEAD = 2
        order = []
        for k in range(18 + LEAD):
            if k < 18:
                order.append((1, k))
            if k >= LEAD:
                order.append((0, k - LEAD))
        PRE = opt['pre']

        def poll_issue():
            Lx, Ly = a.label("pf"), a.label("pf")
            a(f"""
            s_mov_b64 exec, 1
            v_mov_b32 v12, 0
            v_mov_b32 v13, 0
            s_bitcmp1_b32 s{sVAL}, 0
            s_cbranch_scc0 {Lx}
            {PL.format(d='v12', a=f'v{vCP}', b=sr(pWS, 2), z='v13')}
            {Lx}:
            s_bitcmp1_b32 s{sVAL}, 1
            s_cbranch_scc1 {Ly}
            global_load_dword v13, v{vSLW}, {sr(pDBG, 2)} sc1
            {Ly}:
            s_mov_b64 exec, -1
            """)

        def poll_check():
            a(f"""
            s_waitcnt vmcnt(0)
            v_readfirstlane_b32 s{sT0}, v12
            v_readfirstlane_b32 s{sT1}, v13
            s_add_u32 s{sT0}, s{sT0}, s{sT1}
            s_cmp_eq_u32 s{sT0}, 16
            """)

        allr = [x for ks in range(6, 12) for x in frag_reads(ks)]
        NC = opt['nchunk']
        per = len(allr) // NC
        for c in range(NC):
            L1, L2 = a.label("c"), a.label("c")
            if c:
                a(f"s_cmp_eq_u32 s{sDONE}, 0\ns_cbranch_scc0 {L1}")
            a.skip_begin()
            poll_issue()
            a.skip_end()
            a(f"{L1}:")
            if c == 0:
                La = a.label("na")
                a(f"s_cmp_eq_u32 s{sB2}, 0\ns_cbranch_scc0 {La}")
                a.skip_begin()
                for x in frag_reads(4) + frag_reads(5):
                    a(x)
                a.skip_end()
                a(f"{La}:")
            for x in allr[c * per:(c + 1) * per]:
                a(x)
            if c:
                a(f"s_cmp_eq_u32 s{sDONE}, 0\ns_cbranch_scc0 {L2}")
            a.skip_begin()
            poll_check()
            a(f"s_cbranch_scc0 {L2}")
            for n, ks in order[:PRE]:
                a(oload(n, ks))
            a(f"s_mov_b32 s{sDONE}, 1")
            if st.stamps:
                a(f"s_memrealtime {sr(sSTAMP + 2, 2)}")
            a.skip_end()
            a(f"{L2}:")
        Lp, Lgo, Lgo2 = a.label("poll"), a.label("go"), a.label("go")
        a(f"s_cmp_eq_u32 s{sDONE}, 0\ns_cbranch_scc0 {Lgo2}\ns_mov_b32 s{sT2}, 0")
        a.skip_begin()
        a(f"{Lp}:")
        poll_issue()
        a(f"""
        s_add_u32 s{sT2}, s{sT2}, 1
        s_cmp_eq_u32 s{sT2}, 24
        s_cselect_b32 s{sT0}, 2, 0
        s_andn2_b32 s{sVAL}, s{sVAL}, s{sT0}
        """)
        poll_check()
        a(f"""
        s_cbranch_scc1 {Lgo}
        s_cmp_lt_u32 s{sT2}, 0x4000
        s_cbranch_scc1 {Lp}
        {Lgo}:
        """)
        for n, ks in order[:PRE]:
            a(oload(n, ks))
        if st.stamps:
            a(f"s_memrealtime {sr(sSTAMP + 2, 2)}")
        a.skip_end()
        a(f"{Lgo2}:")
        a("s_waitcnt lgkmcnt(0)")
        if st.stamps:
            a(f"v_writelane_b32 v31, s{sSTAMP + 2}, 24")
        log = [("o",) + x for x in order[:PRE]]
        nxt = PRE
        late = [x for ks in range(12, 18) for x in frag_reads(ks)]
        misc = f"""
        s_mov_b32 s{SOUT}, s{pOUT}
        s_and_b32 s{SOUT + 1}, s{pOUT + 1}, 0xffff
        s_mov_b32 s{SOUT + 2}, {2048 * 1152}
        s_mov_b32 s{SOUT + 3}, 0x20000
        s_lshr_b32 s{sT0}, s{sBLK[0]}, 3
        s_lshl_b32 s{sT0}, s{sT0}, 7
        s_and_b32 s{sT1}, s{sBLK[0]}, 3
        s_lshl_b32 s{sT1}, s{sT1}, 5
        s_add_u32 s{sT0}, s{sT0}, s{sT1}
        s_bfe_u32 s{sT1}, s{sBLK[0]}, 0x10002
        s_add_u32 s{sT0}, s{sT0}, s{sT1}
        s_mul_i32 s{sT0}, s{sT0}, 1152
        s_mul_i32 s{sT1}, s{sCG}, 144
        s_add_u32 s{sT0}, s{sT0}, s{sT1}
        v_mul_u32_u24 v6, 2304, v3
        v_add_u32 v6, s{sT0}, v6
        v_lshl_add_u32 v95, v2, 3, v6
        v_and_b32 v7, 1, v2
        v_lshl_add_u32 v6, v7, 5, v6
        v_lshrrev_b32 v7, 1, v2
        v_lshl_add_u32 v{vOUT}, v7, 4, v6
        s_mul_i32 s{sT0}, s{sW}, 2560
        s_add_u32 s{sT0}, s{sT0}, {EXF}
        v_lshlrev_b32 v6, 3, v1
        v_add_u32 v{vXW}, s{sT0}, v6
        s_xor_b32 s{sT0}, s{sW}, 2
        s_mul_i32 s{sT0}, s{sT0}, 2560
        s_add_u32 s{sT0}, s{sT0}, {EXF}
        v_add_u32 v{vXR}, s{sT0}, v6
        """.strip().split("\n")
        gl = []
        for n in range(2):
            gl.append(f"s_lshl_b32 s{sT2}, s{sBLK[n]}, 6\nbuffer_load_dword v{vGL[n]}, v{vGB}, {sr(SWS, 4)}, s{sT2} offen")
        cF = [90, 91]

        def gate_math():
            L = [f"s_mov_b32 s{sT2}, {LOG2E}", f"s_cmp_eq_u32 s{sB2}, 0\ns_cselect_b64 vcc, -1, 0"]
            for step in range(9):
                for n in range(2):
                    g, o = vGL[n], 8 + n
                    L.append([
                        rn(g, g),
                        f"v_mul_f32 v{g}, s{sT2}, v{g}",
                        f"v_exp_f32 v{g}, -v{g}",
                        f"v_add_f32 v{g}, 1.0, v{g}",
                        f"v_rcp_f32 v{g}, v{g}",
                        rn(g, g),
                        f"v_sub_f32 v{o}, 1.0, v{g}",
                        rn(o, o),
                        f"v_cndmask_b32 v{cF[n]}, v{o}, v{g}, vcc"][step])
            return L

        def scale(n, mt):
            d = ACC + (n * 5 + mt) * 4
            return [rn(d, d), rn(d + 1, d + 1), rn(d + 2, d + 2), rn(d + 3, d + 3),
                    f"v_pk_mul_f32 {vr(d, 2)}, {vr(d, 2)}, {vr(cF[0], 2)} {sel(n, 2)}",
                    f"v_pk_mul_f32 {vr(d + 2, 2)}, {vr(d + 2, 2)}, {vr(cF[0], 2)} {sel(n, 2)}"]
        SND = 240
        send = []
        for st_ in range(8):
            for mt in range(5):
                d = ACC + (5 + mt) * 4
                send.append((scale(1, mt) + [pk(SND + 2 * mt, d), pk(SND + 2 * mt + 1, d + 2)])[st_])
        for mt in range(5):
            send.append(f"ds_write_b64 v{vXW}, {vr(SND + 2 * mt, 2)} offset:{mt * 512}")
        ng = len(order)
        gate_at = None
        late_i = 0
        pend_misc = list(misc)
        lastuse = {}
        for gi, (n, ks) in enumerate(order):
            lastuse[ks] = gi
        firstuse = {}
        for gi, (n, ks) in enumerate(order):
            firstuse.setdefault(ks, gi)
        gm = None
        for gi, (n, ks) in enumerate(order):
            pos = log.index(("o", n, ks))
            w = f"s_waitcnt vmcnt({len(log) - 1 - pos})"
            if ks >= 12 and firstuse[ks] == gi:
                need_upto = (ks - 11) * 10
                assert late_i >= need_upto, (gi, ks, late_i)
                w += f" lgkmcnt({min(15, late_i - need_upto)})"
            a(w)
            fill = []
            if nxt < ng:
                fill.append(oload(*order[nxt]))
                log.append(("o",) + order[nxt])
                nxt += 1
            if gl:
                fill.append(gl.pop(0))
                log.append(("g", len(gl)))
                if not gl:
                    gate_at = gi + 9
            cnt = 0
            while late_i < len(late) and cnt < 5 and lastuse[late_i // 10] < gi:
                fill.append(late[late_i])
                late_i += 1
                cnt += 1
            for _ in range(4):
                if pend_misc:
                    fill.append(pend_misc.pop(0))
            if gate_at is not None and gi == gate_at:
                gm = [f"s_waitcnt vmcnt({len(log) - 1 - log.index(('g', 0))})"] + gate_math()
            if gm:
                fill += gm[:7]
                gm = gm[7:]
            if gi >= lastuse_slot1(order) + 1:
                fill += send[:15]
                send = send[15:]
            for mt in range(5):
                d = ACC + (n * 5 + mt) * 4
                a(mfc(d, ar(WF(ks, mt), 4), vr(OF + (n * 18 + ks) * 4, 4), vr(d, 4) if ks else "0"))
                k = (len(fill) + (4 - mt)) // (5 - mt)
                for x in fill[:k]:
                    a(x)
                fill = fill[k:]
        assert not gm and gate_at is not None and gate_at < ng - LEAD - 2, (gate_at, ng)
        st.stamp(a)
        for x in send:
            a(x)
        for st_ in range(10):
            for mt in range(5):
                d = ACC + mt * 4
                a((scale(0, mt) + [rn(d + r, d + r) for r in range(4)])[st_])
            if st_ == 3:
                a("s_waitcnt lgkmcnt(0)\ns_barrier")
                for mt in range(5):
                    a(f"ds_read_b64 {vr(112 + 2 * mt, 2)}, v{vXR} offset:{mt * 512}")
        a("s_waitcnt lgkmcnt(0)")
        for mt in range(5):
            e = ACC + (5 + mt) * 4
            a(f"""
            v_lshlrev_b32 v{e}, 16, v{112 + 2 * mt}
            v_and_b32 v{e + 1}, 0xffff0000, v{112 + 2 * mt}
            v_lshlrev_b32 v{e + 2}, 16, v{112 + 2 * mt + 1}
            v_and_b32 v{e + 3}, 0xffff0000, v{112 + 2 * mt + 1}
            """)
        for mt in range(5):
            d, e = ACC + mt * 4, ACC + (5 + mt) * 4
            a(f"v_pk_add_f32 {vr(d, 2)}, {vr(d, 2)}, {vr(e, 2)}")
            a(f"v_pk_add_f32 {vr(d + 2, 2)}, {vr(d + 2, 2)}, {vr(e + 2, 2)}")
        FO = 128
        for mt in range(5):
            d = ACC + mt * 4
            a(pk(FO + 2 * mt, d))
            a(pk(FO + 2 * mt + 1, d + 2))
        osc = " sc1" if 'O' in st.abl else (" nt" if 'N' in st.abl else "")
        for hh in range(2):
            a(f"v_permlane16_swap_b32 v{FO + 4 * hh}, v{FO + 4 * hh + 2}")
            a(f"v_permlane16_swap_b32 v{FO + 4 * hh + 1}, v{FO + 4 * hh + 3}")
        a(f"""
        buffer_store_dwordx4 {vr(FO, 4)}, v{vOUT}, {sr(SOUT, 4)}, 0 offen{osc}
        buffer_store_dwordx4 {vr(FO + 4, 4)}, v{vOUT}, {sr(SOUT, 4)}, 0 offen offset:64{osc}
        s_mov_b32 s{sM0}, -1
        s_mov_b32 s{sM0 + 1}, 0
        s_mov_b64 exec, {sr(sM0, 2)}
        buffer_store_dwordx2 {vr(FO + 8, 2)}, v95, {sr(SOUT, 4)}, 0 offen offset:128{osc}
        s_mov_b64 exec, -1
        """)
        st.stamp(a)
        st.stamp_store(a, 6)
        a(".Lend:\ns_endpgm")
        K = NAME + "_kernel"
        s = header([(K, 256, 256, LDS_BYTES)])
        s += kernel_open(K) + a.text()
        s += '.section .rodata,"a"\n' + kd(K, 512, accum=256)
        sys.stderr.write(f"nops inserted: {a.nops}\n")
        return s


def lastuse_slot1(order):
    return max(i for i, (n, ks) in enumerate(order) if n == 1)


if __name__ == "__main__":
    import argparse
    ap = argparse.ArgumentParser()
    ap.add_argument("-o", default="g3.s")
    ap.add_argument("--stamps", action="store_true")
    ap.add_argument("--abl", default="")
    ap.add_argument("--opt", default="")
    x = ap.parse_args()
    opt = {k: int(v) for k, v in (kv.split("=") for kv in x.opt.split(",") if kv)}
    open(x.o, "w").write(Gen(stamps=x.stamps, abl=x.abl, opt=opt).build())
```
